```python
import torch

def _softmax(x, axis=-1):
    return torch.softmax(x, dim=axis)
def _gelu(x):
    return torch.nn.functional.gelu(x, approximate="tanh")
def _silu(x):
    return torch.nn.functional.silu(x)
def _sigmoid(x):
    return torch.sigmoid(x)
def _layernorm(x, axis=-1, eps=1e-5):
    m = x.mean(dim=axis, keepdim=True)
    v = x.var(dim=axis, keepdim=True, unbiased=False)
    return (x - m) / torch.sqrt(v + eps)
def _scatter_add(tgt, idx, src, axis=0):
    return tgt.clone().index_add_(axis, idx, src)
def _segment_sum(src, seg, n):
    out = torch.zeros((n,) + src.shape[1:], dtype=src.dtype)
    return out.index_add_(0, seg, src)
def _pad(x, pw):
    flat = tuple(v for pair in reversed(pw) for v in pair)
    return torch.nn.functional.pad(x, flat)

kernel_name = 'recurrent_scan__spectral_gfnet__dense_activation_silu__prompt'

def setup_inputs():

    _w = (lambda a: (lambda t: t.to(torch.bfloat16) if t.is_floating_point() else t)(torch.as_tensor(a)))
    def _A_setup():
        B, S, D = 1, 2048, 512
        Df = D // 2 + 1
        return {
            "x": _w((lambda *s: torch.randn(*s, dtype=torch.bfloat16) * 0.05)(B, S, D)),
            "w_r": _w((lambda *s: torch.randn(*s, dtype=torch.bfloat16) * 3.2)(S, Df) * 0.02),
            "w_i": _w((lambda *s: torch.randn(*s, dtype=torch.bfloat16) * 3.2)(S, Df) * 0.02),
        }
    _A_in = _A_setup()

    def _B_setup():
        B, S, D, F = 1, 2048, 512, 1792
        return {
            "x": _w((lambda *s: torch.randn(*s, dtype=torch.bfloat16) * 0.05)(B, S, D)),
            "w1": _w((lambda *s: torch.randn(*s, dtype=torch.bfloat16) * 3.2)(D, F) * (D ** -0.5)),
            "w2": _w((lambda *s: torch.randn(*s, dtype=torch.bfloat16) * 0.4)(F, D) * (F ** -0.5)),
        }
    _B_in = _B_setup()

    return {
        "A_x": _A_in["x"],
        "A_w_r": _A_in["w_r"],
        "A_w_i": _A_in["w_i"],
        "B_x": _B_in["x"],
        "B_w1": _B_in["w1"],
        "B_w2": _B_in["w2"],
    }

def reference(A_x, A_w_r, A_w_i, B_x, B_w1, B_w2):
    def _A_ref(x, w_r, w_i):
        B, S, D = x.shape
        X = (lambda x, axes=(-2,-1): torch.fft.rfft2(x.float(), dim=axes))(x, axes=(-2, -1))
        W = w_r + 1j * w_i
        X = X * W
        y = (lambda x, s, axes=(-2,-1): torch.fft.irfft2(x, s=s, dim=axes).to(torch.bfloat16))(X, (S, D), axes=(-2, -1))
        return y

    def _B_ref(x, w1, w2):
        h = torch.einsum("bsd,df->bsf", x, w1)
        h = _silu(h)
        out = torch.einsum("bsf,fd->bsd", h, w2)
        return out

    x = A_x
    xn = _layernorm(x, axis=-1)
    s = _A_ref(xn, A_w_r, A_w_i)
    g = _silu(_B_ref(xn, B_w1, B_w2))
    return x + s * g
```

```python
import re

TRANS = ("v_exp_f32", "v_log_f32", "v_rcp_f32", "v_rsq_f32", "v_sqrt_f32", "v_sin_f32", "v_cos_f32")

def regs_of(tok):
    tok = tok.strip()
    neg = tok.lstrip("-")
    if neg.startswith("abs(") and neg.endswith(")"): neg = neg[4:-1]
    if neg.startswith("|") and neg.endswith("|"): neg = neg[1:-1]
    m = re.fullmatch(r"([vas])(\d+)", neg)
    if m: return {(m.group(1), int(m.group(2)))}
    m = re.fullmatch(r"([vas])\[(\d+):(\d+)\]", neg)
    if m: return {(m.group(1), i) for i in range(int(m.group(2)), int(m.group(3)) + 1)}
    if neg == "vcc": return {("s", 106), ("s", 107)}
    if neg == "vcc_lo": return {("s", 106)}
    if neg == "vcc_hi": return {("s", 107)}
    if neg == "exec": return {("s", 126), ("s", 127)}
    if neg == "m0": return {("s", 124)}
    return set()

class Ins:
    def __init__(self, text):
        self.text = text
        t = text.split(";")[0].strip()
        self.label = t.endswith(":")
        self.directive = t.startswith(".")
        self.op = t.split()[0] if t else ""
        rest = t[len(self.op):].strip()
        ops = []; depth = 0; cur = ""
        for ch in rest:
            if ch == "[": depth += 1
            if ch == "]": depth -= 1
            if ch == "," and depth == 0: ops.append(cur.strip()); cur = ""
            else: cur += ch
        if cur.strip(): ops.append(cur.strip())
        mods = ""
        if ops:
            parts = ops[-1].split(None, 1)
            ops[-1] = parts[0]
            if len(parts) > 1: mods = parts[1]
        self.ops = ops; self.mods = mods
        op = self.op
        self.w = set(); self.r = set(); self.cls = "other"
        self.srcc = set(); self.srcab = set(); self.storedata = set()
        R = [regs_of(o) for o in ops]
        VCC = regs_of("vcc")
        if self.label or self.directive or not op:
            self.cls = "none"
        elif op.startswith("v_mfma"):
            self.cls = "mfma"; self.w = R[0]; self.srcab = R[1] | R[2]; self.srcc = R[3]; self.r = self.srcab | self.srcc
            self.passes = 4 if "16x16x32" in op else (8 if "32x32x16" in op else None)
            assert self.passes, op
        elif op.startswith("v_"):
            self.cls = "valu"
            base = op.replace("_e32", "").replace("_e64", "").replace("_dpp", "").replace("_sdwa", "")
            self.trans = base in TRANS
            self.dpp = ("row_" in mods or "quad_perm" in mods or "_dpp" in op or "row_" in " ".join(ops))
            self.sdwa = "sel:" in mods
            self.dot = base.startswith("v_dot")
            if base.startswith("v_cmp"):
                self.w = R[0]; self.r = set().union(*R[1:])
                if base.startswith("v_cmpx"): self.w |= regs_of("exec")
            elif base.startswith("v_permlane") and "swap" in base:
                self.w = R[0] | R[1]; self.r = R[0] | R[1]
            elif base in ("v_add_co_u32", "v_sub_co_u32", "v_subrev_co_u32"):
                self.w = R[0] | R[1]; self.r = set().union(*R[2:])
            elif base in ("v_addc_co_u32", "v_subb_co_u32"):
                self.w = R[0] | R[1]; self.r = set().union(*R[2:])
            else:
                self.w = R[0]; self.r = set().union(*R[1:]) if len(R) > 1 else set()
                if base in ("v_fmac_f32", "v_dot2c_f32_bf16", "v_pk_fmac_f16", "v_writelane_b32") or self.sdwa or self.dpp:
                    self.r |= R[0]
                if base == "v_cndmask_b32" and len(ops) == 3: self.r |= VCC
            self.base = base
        elif op.startswith("buffer_") or op.startswith("global_"):
            self.cls = "vmem"
            alltoks = set().union(*R)
            lds = (" lds" in " " + mods) or "_lds_" in op
            self.lds = lds
            if "load" in op and not lds:
                self.w = R[0]; self.r = set().union(*R[1:])
                if "d16" in op: self.r |= R[0]
            elif "store" in op:
                self.r = alltoks
                data = R[0] if op.startswith("buffer_") else R[1]
                if "x4" in op or "x3" in op: self.storedata = data
            else:
                self.r = alltoks
                if "atomic" in op and "sc0" in mods: self.w = R[0]
            if lds: self.r |= regs_of("m0")
        elif op.startswith("ds_"):
            self.cls = "ds"
            if op.startswith("ds_read") or "permute" in op or "swizzle" in op:
                self.w = R[0]; self.r = set().union(*R[1:])
            else:
                self.r = set().union(*R)
        elif op.startswith("s_"):
            self.cls = "salu"
            if op in ("s_waitcnt", "s_barrier", "s_nop", "s_endpgm", "s_setprio", "s_sleep") or op.startswith("s_cbranch") or op == "s_branch":
                pass
            elif op.startswith("s_cmp"):
                self.r = set().union(*R)
            elif "saveexec" in op:
                self.w = R[0] | regs_of("exec"); self.r = R[1] | regs_of("exec")
            else:
                self.w = R[0] if R else set(); self.r = set().union(*R[1:]) if len(R) > 1 else set()
    def states(self):
        if self.cls == "none": return 0
        if self.op == "s_nop": return int(self.ops[0], 0) + 1
        return 1

def isv(rs): return {x for x in rs if x[0] in "va"}
def iss(rs): return {x for x in rs if x[0] == "s"}

def need(p, c):
    n = 0
    EXEC = regs_of("exec")
    if p.cls == "valu":
        wv = isv(p.w); ws = iss(p.w)
        if c.cls == "mfma":
            if wv & c.r: n = max(n, 2)
            if ws & EXEC: n = max(n, 4)
        if c.cls == "valu":
            if c.dpp and (wv & c.r): n = max(n, 2)
            if c.dpp and (ws & EXEC): n = max(n, 5)
            if c.base.startswith("v_permlane") and (wv & c.r): n = max(n, 2)
            if c.base in ("v_readlane_b32", "v_readfirstlane_b32") and (wv & c.r): n = max(n, 1)
            if c.base in ("v_readlane_b32", "v_readfirstlane_b32", "v_writelane_b32") and (ws & EXEC): n = max(n, 4)
            if c.base in ("v_readlane_b32", "v_writelane_b32") and (ws & c.r): n = max(n, 4)
            if ws & c.r: n = max(n, 2)
            if p.trans and not c.trans and (wv & c.r): n = max(n, 1)
            if (p.sdwa or "op_sel" in p.mods) and (wv & (c.r | c.w)): n = max(n, 1)
            if p.dot and (wv & (c.r | c.w)):
                same = (c.base == p.base)
                if same and c.base == "v_dot2c_f32_bf16" and not (wv & (regs_of(c.ops[1]) | regs_of(c.ops[2]))): pass
                else: n = max(n, 3)
        if c.cls in ("vmem", "ds") and p.dot and (wv & c.r): n = max(n, 3)
        if c.cls == "vmem" and (ws & c.r): n = max(n, 5)
        if c.cls == "salu" and (ws & c.r): n = max(n, 1)
    if p.cls == "mfma":
        k = {4: 0, 8: 1}[p.passes]
        D = p.w
        if c.cls == "mfma":
            if D & c.srcab: n = max(n, (8, 12)[k])
            if D & c.srcc:
                if c.srcc == D and c.passes == p.passes: pass
                else: n = max(n, (6, 10)[k])
            elif D & c.w: n = max(n, (8, 12)[k])
        elif c.cls in ("valu", "vmem", "ds"):
            if D & (c.r | c.w): n = max(n, (8, 12)[k])
        if c.cls in ("valu",) and (p.srcc & c.w): n = max(n, (3, 7)[k])
        if c.cls in ("vmem", "ds") and (p.srcc & c.w): n = max(n, (3, 7)[k])
    if p.cls == "vmem" and p.storedata:
        if p.storedata & c.w: n = max(n, 2)
    if p.cls == "salu":
        if (regs_of("m0") & p.w) and c.cls == "vmem" and c.lds: n = max(n, 1)
    return n

class Prog:
    def __init__(self):
        self.lines = []
        self.vm = 0
        self.lg = 0
        self.tags = {}
    def __call__(self, text):
        for l in text.strip("\n").split("\n"):
            l = l.strip()
            if not l or l.startswith(";"): continue
            if getattr(self, "drop", None) and self.drop(l): continue
            i = Ins(l)
            self.lines.append(i)
            if i.cls == "vmem": self.vm += 1
            if i.cls == "ds": self.lg += 1
    def tag_vm(self, name): self.tags[("vm", name)] = self.vm
    def tag_lg(self, name): self.tags[("lg", name)] = self.lg
    def wait(self, vm=None, lg=None):
        parts = []
        if vm is not None:
            n = self.vm - self.tags[("vm", vm)] if isinstance(vm, str) or isinstance(vm, tuple) else vm
            parts.append(f"vmcnt({min(n, 63)})")
        if lg is not None:
            n = self.lg - self.tags[("lg", lg)] if isinstance(lg, str) or isinstance(lg, tuple) else lg
            parts.append(f"lgkmcnt({min(n, 15)})")
        self("s_waitcnt " + " ".join(parts))
    def render(self, window=24):
        out = []
        hist = []
        pos = 0
        nnop = 0
        for ins in self.lines:
            if ins.cls == "none":
                out.append(ins.text if ins.label else "    " + ins.text)
                continue
            req = 0
            for (p, ppos) in hist[-window:]:
                k = need(p, ins)
                if k:
                    have = pos - ppos
                    req = max(req, k - have)
            while req > 0:
                k = min(req, 16)
                out.append(f"    s_nop {k-1}")
                pos += k; req -= k; nnop += 1
            out.append("    " + ins.text)
            pos += ins.states()
            hist.append((ins, pos))
        return "\n".join(out)

def kernel_text(name, prog, vgpr, agpr=0, sgpr=96):
    acc = (vgpr + 3) // 4 * 4
    nfv = acc + agpr if agpr else vgpr
    return f""".text
.globl {name}
.p2align 8
.type {name},@function
{name}:
{prog.render()}
    s_endpgm
.section .rodata,"a"
.p2align 6
.amdhsa_kernel {name}
  .amdhsa_next_free_vgpr {nfv}
  .amdhsa_next_free_sgpr {sgpr}
  .amdhsa_accum_offset {acc}
  .amdhsa_group_segment_fixed_size 0
  .amdhsa_kernarg_size 72
  .amdhsa_user_sgpr_count 2
  .amdhsa_user_sgpr_kernarg_segment_ptr 1
  .amdhsa_system_sgpr_workgroup_id_x 1
  .amdhsa_float_denorm_mode_32 3
  .amdhsa_float_denorm_mode_16_64 3
.end_amdhsa_kernel
"""

def srd(p, s, base, nbytes, off=0):
    if off:
        p(f"s_add_u32 s{s}, s{base}, {off:#x}")
        p(f"s_addc_u32 s{s+1}, s{base+1}, 0")
    else:
        p(f"s_mov_b32 s{s}, s{base}")
        p(f"s_mov_b32 s{s+1}, s{base+1}")
    p(f"s_mov_b32 s{s+2}, {nbytes:#x}")
    p(f"s_mov_b32 s{s+3}, 0x00020000")
```

```python
import sys, struct
from asmgen import *

NAME = "recurrent_scan__spectral_gfnet__dense_activation_silu__prompt"
MB = 1 << 20
XN_OFF, Y_OFF, WT_OFF, Z_OFF, W2T_OFF, H_OFF = 0, 2*MB, 4*MB, 6*MB, 8*MB, 10*MB
WS_BYTES = 268435456
def f32(x): return "0x%08x" % struct.unpack("<I", struct.pack("<f", x))[0]
def vr(a, n=4, k="v"): return f"{k}[{a}:{a+n-1}]"
def ar(a, n=4): return vr(a, n, "a")
MF = "v_mfma_f32_16x16x32_bf16"
ST = ""

STAMPS = False
STAMP_OFF = 64*MB
def stamp(p, i):
    if STAMPS:
        p(f"s_memtime s[{60+2*i}:{61+2*i}]")
def stamp_begin(p):
    if STAMPS:
        p("s_memrealtime s[56:57]")
        p("s_memtime s[60:61]")
def stamp_end(p, n, kidx, srd="s[24:27]", wave="s30"):
    if not STAMPS: return
    p("s_waitcnt vmcnt(0)")
    p(f"s_memtime s[{60+2*n}:{61+2*n}]")
    p("s_memrealtime s[58:59]")
    p("s_waitcnt lgkmcnt(0)")
    p(f"s_lshl_b32 s54, s2, 2")
    p(f"s_add_u32 s54, s54, {wave}")
    p(f"s_lshl_b32 s54, s54, 6")
    p(f"s_add_u32 s54, s54, {STAMP_OFF + kidx*65536:#x}")
    p("v_mov_b32 v0, 0")
    p("s_mov_b64 exec, 1")
    p("v_mov_b32 v1, s56"); p(f"buffer_store_dword v1, v0, {srd}, s54 offen")
    p("v_mov_b32 v2, s58"); p(f"buffer_store_dword v2, v0, {srd}, s54 offen offset:4")
    for i in range(1, n+1):
        p(f"s_sub_u32 s55, s{60+2*i}, s60")
        p(f"v_mov_b32 v{2+i}, s55")
        p(f"buffer_store_dword v{2+i}, v0, {srd}, s54 offen offset:{4+4*i}")

def prologue(p, lane="v1", t="v2", g="v3", wave="s30"):
    p(f"""
    s_cmp_ge_u32 s2, 256
    s_cbranch_scc1 L_end_{p.name}
    v_and_b32 {lane}, 63, v0
    v_lshrrev_b32 v4, 6, v0
    v_and_b32 {t}, 15, v0
    v_bfe_u32 {g}, v0, 4, 2
    v_readfirstlane_b32 {wave}, v4
    """)

def k1():
    p = Prog(); p.name = "k1"
    stamp_begin(p)
    p("""
    s_load_dwordx4 s[4:7], s[0:1], 0
    s_load_dwordx2 s[8:9], s[0:1], 16
    s_load_dwordx2 s[10:11], s[0:1], 64
    """)
    prologue(p)
    FL, XL, YL = 0, 32768, 0
    p("""
    s_and_b32 s28, s2, 7
    s_lshl_b32 s28, s28, 2
    s_bfe_u32 s29, s2, 0x20003
    s_add_u32 s28, s28, s29
    s_lshr_b32 s29, s2, 5
    """)
    p(f"""
    v_lshrrev_b32 v5, 2, v1            ; q
    v_lshrrev_b32 v6, 4, v1            ; q>>2
    v_sub_u32 v6, 0, v6
    v_xor_b32 v6, v6, v1
    v_and_b32 v6, 3, v6                ; chunk
    s_lshl_b32 s31, s30, 4
    v_add_u32 v5, s31, v5
    v_lshlrev_b32 v5, 15, v5
    s_lshl_b32 s31, s28, 10
    v_lshl_add_u32 v6, v6, 4, s31
    v_add_u32 v5, v5, v6
    s_lshl_b32 s36, s30, 14
    s_add_u32 s36, s36, {XL}
    s_lshl_b32 s32, s29, 7
    s_waitcnt lgkmcnt(0)
    """)
    stamp(p, 7)
    srd(p, 12, 4, 2*MB)
    XF = 64
    for ks in range(16):
        p(f"s_add_u32 m0, s36, {1024*ks}")
        p(f"s_add_u32 s33, s32, {64*ks}")
        p("s_and_b32 s33, s33, 0x3ff")
        p(f"buffer_load_dwordx4 v5, s[12:15], s33 offen lds")
        p.tag_vm(("x", ks))
    stamp(p, 8)
    srd(p, 16, 6, 2048*514)
    srd(p, 20, 8, 2048*514)
    srd(p, 24, 10, WS_BYTES)
    WT = 160
    p("""
    s_lshl_b32 s33, s28, 6
    s_lshl_b32 s34, s30, 4
    s_add_u32 s33, s33, s34
    v_lshrrev_b32 v7, 5, v1
    v_lshl_add_u32 v7, v7, 3, s33
    s_movk_i32 s34, 514
    v_mul_lo_u32 v8, v7, s34
    v_and_b32 v9, 31, v1
    s_lshl_b32 s34, s29, 5
    s_add_u32 s34, s34, 1
    v_add_u32 v9, s34, v9
    v_lshl_add_u32 v8, v9, 1, v8
    """)
    for e in range(8):
        p(f"buffer_load_ushort v{WT+e}, v8, s[16:19], 0 offen offset:{514*e}")
    for e in range(8):
        p(f"buffer_load_ushort v{WT+8+e}, v8, s[20:23], 0 offen offset:{514*e}")
    p.tag_vm("W")
    stamp(p, 9)
    p(f"""
    v_and_b32 v9, 255, v9
    v_lshlrev_b32 v9, 13, v9
    v_lshl_add_u32 v10, v7, 2, v9
    v_add_u32 v10, {WT_OFF:#x}, v10
    """)
    p(f"""
    s_lshl_b32 s33, s29, 6
    s_lshl_b32 s34, s30, 4
    s_add_u32 s33, s33, s34
    v_add_u32 v11, s33, v2          ; k'
    v_lshrrev_b32 v12, 1, v11       ; k
    v_cmp_eq_u32 vcc, 0, v12
    v_mov_b32 v13, 0x100
    v_cndmask_b32 v12, v12, v13, vcc   ; k_eff
    v_cvt_f32_u32 v13, v12
    v_mul_f32 v13, {f32(1/512)}, v13   ; delta
    v_and_b32 v14, 1, v11
    v_cvt_f32_u32 v14, v14
    v_mul_f32 v14, 0.25, v14           ; phi
    s_lshl_b32 s33, s29, 6             ; 64 kg
    v_lshl_add_u32 v15, v3, 3, s33     ; 8g + 64kg
    v_cvt_f32_u32 v15, v15
    v_fma_f32 v14, v15, v13, v14
    v_fract_f32 v14, v14
    v_mul_f32 v15, {f32(25.0)}, v13    ; 25 delta
    v_lshlrev_b32 v16, 4, v1
    s_lshl_b32 s33, s30, 10
    v_add_u32 v17, s33, v16
    """)
    for ks in range(8):
        T = 20 + 12 * (ks & 1)
        for i in range(8):
            p(f"v_cos_f32 v{T+i}, v14")
            p(f"v_add_f32 v14, v14, v{15 if i == 7 else 13}")
        for q in range(4):
            p(f"v_cvt_pk_bf16_f32 v{T+8+q}, v{T+2*q}, v{T+2*q+1}")
        p(f"ds_write_b128 v17, {vr(T+8)} offset:{FL+ks*4096}")
    p("s_waitcnt lgkmcnt(0)")
    stamp(p, 1)
    p("s_barrier")
    for ks in range(8):
        for u in range(4):
            p(f"ds_read_b128 {ar(16*ks+4*u)}, v16 offset:{FL+ks*4096+u*1024}")
    p(f"""
    v_lshrrev_b32 v19, 2, v2
    v_sub_u32 v19, 0, v19
    v_xor_b32 v19, v19, v3
    v_and_b32 v19, 3, v19
    v_lshl_add_u32 v19, v2, 2, v19
    v_lshl_add_u32 v19, v19, 4, s36
    v_bfe_u32 v18, v2, 1, 1
    v_cvt_f32_u32 v18, v18
    v_fma_f32 v18, v18, -2.0, 1.0
    s_mov_b32 s35, 0x3f803f80
    v_mov_b32 v44, 0
    v_mov_b32 v45, 0
    v_mov_b32 v46, 0
    v_mov_b32 v47, 0
    """)
    def stats(ks):
        for q in range(4):
            p(f"v_dot2c_f32_bf16 v{44+(q&1)}, s35, v{XF+4*ks+q}")
            p(f"v_dot2c_f32_bf16 v{46+(q&1)}, v{XF+4*ks+q}, v{XF+4*ks+q}")
    for grp in range(4):
        p.wait(vm=("x", 4*grp+3))
        if grp == 0: stamp(p, 2)
        for ks in range(4*grp, 4*grp+4):
            p(f"ds_read_b128 {vr(XF+4*ks)}, v19 offset:{1024*ks}")
        p.tag_lg(("x", grp))
        if grp > 0:
            p.wait(lg=("x", grp-1))
            for ks in range(4*grp-4, 4*grp): stats(ks)
    p.wait(lg=("x", 3))
    p("s_barrier")
    for ks in range(12, 16): stats(ks)
    stamp(p, 3)
    E, O = 128, 144
    fin = f"""
    v_add_f32 v44, v44, v45
    v_add_f32 v46, v46, v47
    v_mov_b32 v45, v44
    v_mov_b32 v47, v46
    v_permlane32_swap_b32 v44, v45
    v_permlane32_swap_b32 v46, v47
    v_add_f32 v44, v44, v45
    v_add_f32 v46, v46, v47
    v_mov_b32 v45, v44
    v_mov_b32 v47, v46
    v_permlane16_swap_b32 v44, v45
    v_permlane16_swap_b32 v46, v47
    v_add_f32 v44, v44, v45
    v_add_f32 v46, v46, v47
    v_mul_f32 v44, {f32(1/512)}, v44
    v_mul_f32 v46, {f32(1/512)}, v46
    v_fma_f32 v46, -v44, v44, v46
    v_max_f32 v46, 0, v46
    v_cvt_pk_bf16_f32 v44, v44, v46
    v_and_b32 v46, 0xffff0000, v44
    v_lshlrev_b32 v44, 16, v44
    v_add_f32 v46, {f32(1e-5)}, v46
    v_cvt_pk_bf16_f32 v46, v46, v46
    v_lshlrev_b32 v46, 16, v46
    v_sqrt_f32 v46, v46
    v_cvt_pk_bf16_f32 v46, v46, v46
    v_lshlrev_b32 v46, 16, v46
    v_rcp_f32 v46, v46
    v_lshlrev_b32 v47, 4, v3
    ds_bpermute_b32 v48, v47, v46
    ds_bpermute_b32 v49, v47, v46 offset:4
    ds_bpermute_b32 v50, v47, v46 offset:8
    ds_bpermute_b32 v51, v47, v46 offset:12
    """.strip().split("\n")
    for q in range(8):
        x = XF + q
        fin += f"""v_lshlrev_b32 v20, 16, v{x}
        v_and_b32 v21, 0xffff0000, v{x}
        v_sub_f32 v20, v20, v44
        v_sub_f32 v21, v21, v44
        v_cvt_pk_bf16_f32 v22, v20, v21
        v_lshlrev_b32 v20, 16, v22
        v_and_b32 v21, 0xffff0000, v22
        v_mul_f32 v20, v20, v46
        v_mul_f32 v21, v21, v46
        v_cvt_pk_bf16_f32 v{24+q}, v20, v21""".split("\n")
    fin = [l for l in fin]
    mf = []
    for ks in range(8):
        for u in range(4):
            c = "0" if ks == 0 else vr(E+4*u)
            mf.append(f"{MF} {vr(E+4*u)}, {vr(XF+4*ks)}, {ar(16*ks+4*u)}, {c}")
        for u in range(4):
            c = "0" if ks == 0 else vr(O+4*u)
            mf.append(f"{MF} {vr(O+4*u)}, {vr(XF+4*(ks+8))}, {ar(16*ks+4*u)}, {c}")
    fi = 0
    for i, m in enumerate(mf):
        p(m)
        for _ in range(2):
            if fi < len(fin): p(fin[fi]); fi += 1
    while fi < len(fin): p(fin[fi]); fi += 1
    stamp(p, 4)
    p(f"""
    s_lshl_b32 s33, s28, 2
    s_add_u32 s33, s33, s30
    s_lshl_b32 s33, s33, 4
    s_lshl_b32 s34, s29, 1
    s_add_u32 s33, s33, s34
    s_lshl_b32 s33, s33, 10
    buffer_store_dwordx4 v[24:27], v16, s[24:27], s33 offen{ST}
    buffer_store_dwordx4 v[28:31], v16, s[24:27], s33 offen offset:1024{ST}
    """)
    p(f"""
    s_waitcnt lgkmcnt(0)
    v_mul_f32 v48, {f32(2.0**-19)}, v48
    v_mul_f32 v49, {f32(2.0**-19)}, v49
    v_mul_f32 v50, {f32(2.0**-19)}, v50
    v_mul_f32 v51, {f32(2.0**-19)}, v51
    s_lshl_b32 s33, s29, 6
    v_add_u32 v19, s33, v2
    v_cmp_gt_u32 vcc, 2, v19
    v_mov_b32 v52, 1.0
    v_cndmask_b32 v52, v52, 0.5, vcc
    s_lshl_b32 s33, s30, 2
    v_add_u32 v19, s33, v3
    v_and_b32 v20, 14, v2
    v_xor_b32 v19, v19, v20
    v_lshlrev_b32 v19, 3, v19
    v_lshl_add_u32 v19, v2, 7, v19
    """)
    for u in range(4):
        for r in range(4):
            p(f"v_fma_f32 v{E+4*u+r}, v{O+4*u+r}, v18, v{E+4*u+r}")
            p(f"v_mul_f32 v{E+4*u+r}, v{E+4*u+r}, v{48+r}")
            if u == 0: p(f"v_mul_f32 v{E+r}, v{E+r}, v52")
        p(f"v_cvt_pk_bf16_f32 v{32+2*u}, v{E+4*u}, v{E+4*u+1}")
        p(f"v_cvt_pk_bf16_f32 v{33+2*u}, v{E+4*u+2}, v{E+4*u+3}")
        p(f"ds_write_b64 v19, {vr(32+2*u,2)} offset:{YL+2048*u}")
    p(f"""
    s_bfe_u32 s33, s28, 0x30001
    v_and_b32 v20, 7, v1
    v_xor_b32 v21, s33, v20            ; chunk
    v_lshrrev_b32 v22, 3, v1           ; row&7
    v_lshrrev_b32 v23, 4, v1           ; (row&7)>>1
    v_xor_b32 v21, v21, v23            ; n=0 position
    v_lshlrev_b32 v21, 4, v21
    v_lshl_add_u32 v21, v22, 7, v21
    s_lshl_b32 s33, s30, 11
    v_add_u32 v21, s33, v21            ; + w*2048
    v_xor_b32 v23, 64, v21             ; n=1: position ^ 4
    v_lshlrev_b32 v22, 12, v22
    v_lshl_add_u32 v22, v20, 4, v22
    s_lshl_b32 s33, s29, 6
    s_lshl_b32 s34, s30, 4
    s_add_u32 s33, s33, s34
    s_lshl_b32 s33, s33, 12
    s_lshl_b32 s34, s28, 7
    s_add_u32 s33, s33, s34
    s_add_u32 s33, s33, {Y_OFF:#x}
    s_add_u32 s34, s33, 0x8000
    s_waitcnt lgkmcnt(0)
    s_barrier
    ds_read_b128 v[32:35], v21 offset:{YL}
    ds_read_b128 v[36:39], v23 offset:{YL+1024}
    """)
    p.wait(vm="W")
    for e in range(8):
        p(f"v_lshl_or_b32 v{WT+e}, v{WT+8+e}, 16, v{WT+e}")
    p(f"""
    s_waitcnt lgkmcnt(0)
    buffer_store_dwordx4 v[32:35], v22, s[24:27], s33 offen{ST}
    buffer_store_dwordx4 v[36:39], v22, s[24:27], s34 offen{ST}
    buffer_store_dwordx4 {vr(WT)}, v10, s[24:27], 0 offen
    buffer_store_dwordx4 {vr(WT+4)}, v10, s[24:27], 0 offen offset:16
    """)
    stamp(p, 5)
    stamp(p, 6)
    stamp_end(p, 10, 0)
    p("L_end_k1:")
    return kernel_text("k1_kernel", p, 176, 128)


def cost(l):
    op = l.strip().split()[0]
    if op.startswith("v_mfma"): return 16
    if op.replace("_e32", "") in TRANS: return 8
    if op.startswith("s_waitcnt") or op.startswith("s_barrier"): return 4
    if op.startswith("s_"): return 2
    return 4

class Side:
    def __init__(self, p, gap): self.p = p; self.q = []; self.gap = gap; self.acc = 0
    def add(self, f): self.q.append(f)
    def emit(self, text):
        for l in text.strip("\n").split("\n"):
            l = l.strip()
            if not l or l.startswith(";"): continue
            self.p(l); self.acc += cost(l)
            if self.acc >= self.gap and self.q:
                self.q.pop(0)(); self.acc = 0
    def flush(self, n=None):
        while self.q and (n is None or n > 0):
            self.q.pop(0)()
            if n is not None: n -= 1
        self.acc = 0

def cmul(e, re, im, c, s, conj_tw, o_re, o_im):
    n = "neg_lo:[1,0,0] neg_hi:[1,0,0]"
    e(f"v_pk_mul_f32 {vr(o_re,2)}, {vr(re,2)}, {vr(c,2)}")
    e(f"v_pk_mul_f32 {vr(o_im,2)}, {vr(im,2)}, {vr(c,2)}")
    e(f"v_pk_fma_f32 {vr(o_re,2)}, {vr(im,2)}, {vr(s,2)}, {vr(o_re,2)}" + (" " + n if conj_tw else ""))
    e(f"v_pk_fma_f32 {vr(o_im,2)}, {vr(re,2)}, {vr(s,2)}, {vr(o_im,2)}" + ("" if conj_tw else " " + n))

def k2():
    p = Prog(); p.name = "k2"
    stamp_begin(p)
    p("""
    s_load_dwordx4 s[4:7], s[0:1], 32
    s_load_dwordx2 s[10:11], s[0:1], 64
    """)
    prologue(p)
    W1L, YL, UL, ZL = 0, 114688, 122880, 114688
    FC, FS, FN, C3, S3, N3, TC, TS = 16, 24, 32, 40, 48, 56, 64, 72
    WRAW, WR, WI, YF, AC, TM, PK, W2I, W2O, HA, WB = 80, 88, 96, 104, 136, 152, 168, 176, 184, 192, 16
    VD = 248
    p(f"""
    s_and_b32 s28, s2, 3
    s_lshl_b32 s28, s28, 2
    s_bfe_u32 s31, s2, 0x20003
    s_add_u32 s28, s28, s31            ; rb
    s_bfe_u32 s29, s2, 0x10002
    s_lshl_b32 s29, s29, 3
    s_lshr_b32 s32, s2, 5
    s_add_u32 s29, s29, s32            ; cg
    s_add_u32 s31, s31, s32
    s_and_b32 s31, s31, 3              ; rot
    v_lshlrev_b32 v4, 4, v1            ; lane*16
    s_lshl_b32 s36, s2, 13
    s_lshl_b32 s37, s30, 11
    s_add_u32 s38, s36, s37
    s_add_u32 s38, s38, {Y_OFF:#x}
    s_add_u32 s37, s37, {YL}
    s_lshl_b32 s33, s30, 4
    v_add_u32 v5, s33, v2              ; c = 16w+t
    v_lshlrev_b32 v6, 2, v5
    v_lshl_add_u32 v6, v3, 10, v6
    s_add_u32 s39, s36, {WT_OFF:#x}
    s_add_u32 s40, s39, 0x1000
    """)
    for j in range(7):
        p(f"""
        v_add_u32 v7, {64*j}, v1
        v_mul_u32_u24 v8, 4682, v7
        v_lshrrev_b32 v8, 16, v8           ; p
        v_mul_u32_u24 v9, 14, v8
        v_sub_u32 v7, v7, v9               ; cc
        v_bfe_u32 v9, v8, 2, 2
        v_lshlrev_b32 v9, 3, v9
        v_and_b32 v10, 3, v8
        v_add_u32 v9, v9, v10
        v_lshrrev_b32 v10, 4, v8
        v_lshl_add_u32 v9, v10, 2, v9      ; k
        v_mul_u32_u24 v9, 3584, v9
        v_lshl_add_u32 v{VD+j}, v7, 4, v9
        """)
    p("s_waitcnt lgkmcnt(0)")
    stamp(p, 1)
    srd(p, 24, 10, WS_BYTES)
    p(f"""
    s_mov_b32 m0, s37
    buffer_load_dwordx4 v4, s[24:27], s38 offen lds
    buffer_load_dwordx4 v4, s[24:27], s38 offen offset:1024 lds
    """)
    p.tag_vm("Y")
    srd(p, 12, 4, 512*1792*2)
    srd(p, 16, 6, 512*1792*2)
    for jd in range(2):
        for r in range(4):
            p(f"buffer_load_dword v{WRAW+4*jd+r}, v6, s[24:27], s{39+jd} offen offset:{256*r}")
    p.tag_vm("WT")
    sd = Side(p, 64)
    p(f"""
    s_lshl_b32 s41, s28, 3
    s_lshl_b32 s33, s30, 1
    s_add_u32 s41, s41, s33
    s_lshl_b32 s41, s41, 14
    s_mul_i32 s42, s29, 224
    s_mul_i32 s33, s30, {32*3584}
    s_add_u32 s42, s42, s33
    s_mul_i32 s43, s30, 7168
    """)
    for c in range(4):
        def setup(c=c):
            p(f"""
            s_add_u32 s52, s31, {c}
            s_and_b32 s52, s52, 3
            s_lshl_b32 s44, s52, 12
            s_add_u32 s44, s44, s41
            s_add_u32 s45, s44, 0x4000
            s_mul_i32 s46, s52, {128*3584}
            s_add_u32 s46, s46, s42
            """)
        for j in range(7):
            def f(c=c, j=j, setup=setup):
                if j == 0: setup()
                p(f"s_add_u32 m0, s43, {W1L + c*4*7168 + j*1024}")
                p(f"buffer_load_dwordx4 v{VD+j}, s[12:15], s46 offen lds")
            sd.add(f)
        for q in range(4):
            for jj in range(2):
                def f(c=c, q=q, jj=jj):
                    p(f"buffer_load_dwordx4 {ar((jj*16+4*c+q)*4)}, v4, s[24:27], s{44+jj} offen offset:{1024*q}")
                    if q == 3 and jj == 1: p.tag_vm(("ch", c))
                sd.add(f)
        if c == 0:
            def f():
                p(f"""
                s_lshr_b32 s47, s2, 2              ; kb
                s_mul_i32 s48, s47, 37
                s_lshr_b32 s48, s48, 8             ; jp
                s_mul_i32 s49, s48, 7
                s_sub_u32 s49, s47, s49            ; pp
                s_lshl_b32 s50, s49, 5             ; 32 pp
                s_add_u32 s51, s50, 16
                s_cmp_lt_u32 s49, 3
                s_cselect_b32 s50, s50, s51
                s_cmp_eq_u32 s49, 6
                s_cselect_b32 s50, 96, s50
                s_cselect_b32 s51, 112, 16
                s_mul_i32 s48, s48, 224
                s_add_u32 s50, s50, s48            ; fA
                s_and_b32 s48, s2, 3
                s_lshl_b32 s49, s48, 2
                s_add_u32 s50, s50, s49            ; fA+4g
                s_add_u32 s51, s51, s50            ; fB+4g
                s_lshl_b32 s50, s50, 10
                s_lshl_b32 s51, s51, 10
                v_lshlrev_b32 v11, 2, v0
                """)
                for e in range(8):
                    p(f"buffer_load_dword v{W2I+e}, v11, s[16:19], s{50+(e>>2)} offen offset:{1024*(e&3)}")
                p.tag_vm("w2")
            sd.add(f)
    e = sd.emit
    e(f"""
    v_cvt_f32_u32 v7, v5                   ; c
    v_mul_f32 v8, {f32(1/64)}, v7          ; delta64 = c/64
    v_lshlrev_b32 v9, 3, v3
    v_cvt_f32_u32 v9, v9
    v_mul_f32 v9, v9, v8                   ; 8g*c/64
    v_mul_f32 v10, {f32(25.0)}, v8
    """)
    for ks in range(2):
        for i in range(8):
            e(f"v_cos_f32 v{TM+i}, v9")
            e(f"v_sin_f32 v{TM+8+i}, v9")
            e(f"v_add_f32 v9, v9, v{10 if i == 7 else 8}")
        for q in range(4):
            e(f"v_cvt_pk_bf16_f32 v{FC+4*ks+q}, v{TM+2*q}, v{TM+2*q+1}")
            e(f"v_cvt_pk_bf16_f32 v{FS+4*ks+q}, v{TM+8+2*q}, v{TM+9+2*q}")
            e(f"v_xor_b32 v{FN+4*ks+q}, 0x80008000, v{FS+4*ks+q}")
    e(f"""
    v_mul_f32 v8, {f32(1/2048)}, v7
    v_lshlrev_b32 v9, 2, v3
    v_cvt_f32_u32 v12, v9                  ; 4g
    v_mul_f32 v9, v12, v8
    v_mul_f32 v10, {f32(13.0)}, v8
    """)
    for i in range(8):
        e(f"v_cos_f32 v{TC+i}, v9")
        e(f"v_sin_f32 v{TS+i}, v9")
        e(f"v_add_f32 v9, v9, v{10 if i == 3 else 8}")
    def yread():
        p.wait(vm="Y")
        p("s_barrier")
        for part in range(2):
            for j in range(2):
                for ks in range(2):
                    p(f"ds_read_b128 {vr(YF+16*part+8*j+4*ks)}, v{13+ks} offset:{part*4096+j*2048}")
        p.tag_lg("y")
    e(f"""
    v_lshrrev_b32 v13, 1, v2
    v_xor_b32 v13, v13, v3
    v_lshlrev_b32 v13, 4, v13
    v_lshl_add_u32 v13, v2, 7, v13
    v_add_u32 v13, {YL}, v13
    v_xor_b32 v14, 64, v13
    """)
    yread()
    for j in range(2):
        e(f"""
        v_add_u32 v8, {16*j}, v2
        v_cvt_f32_u32 v8, v8
        v_mul_f32 v8, {f32(1/32)}, v8
        v_mul_f32 v9, v12, v8
        v_mul_f32 v10, {f32(13.0)}, v8
        """)
        for i in range(8):
            e(f"v_cos_f32 v{TM+i}, v9")
            e(f"v_sin_f32 v{TM+8+i}, v9")
            if i < 7: e(f"v_add_f32 v9, v9, v{10 if i == 3 else 8}")
        for q in range(4):
            e(f"v_cvt_pk_bf16_f32 v{C3+4*j+q}, v{TM+2*q}, v{TM+2*q+1}")
            e(f"v_cvt_pk_bf16_f32 v{S3+4*j+q}, v{TM+8+2*q}, v{TM+9+2*q}")
            e(f"v_xor_b32 v{N3+4*j+q}, 0x80008000, v{S3+4*j+q}")
    stamp(p, 2)
    p.wait(lg="y")
    yr = lambda j, ks: vr(YF+8*j+4*ks); yi = lambda j, ks: vr(YF+16+8*j+4*ks)
    Ar = lambda j: AC+4*j; Ai = lambda j: AC+8+4*j
    for ks in range(2):
        for j in range(2):
            e(f"{MF} {vr(Ar(j))}, {yr(j,ks)}, {vr(FC+4*ks)}, {'0' if ks == 0 else vr(Ar(j))}")
            e(f"{MF} {vr(Ai(j))}, {yi(j,ks)}, {vr(FC+4*ks)}, {'0' if ks == 0 else vr(Ai(j))}")
        for j in range(2):
            e(f"{MF} {vr(Ar(j))}, {yi(j,ks)}, {vr(FS+4*ks)}, {vr(Ar(j))}")
            e(f"{MF} {vr(Ai(j))}, {yr(j,ks)}, {vr(FN+4*ks)}, {vr(Ai(j))}")
    p.wait(vm="WT")
    for i in range(8):
        e(f"v_lshlrev_b32 v{WR+i}, 16, v{WRAW+i}")
        e(f"v_and_b32 v{WI+i}, 0xffff0000, v{WRAW+i}")
    def mulpack(c, s, conj):
        for h in range(4):
            cmul(e, AC+2*h, AC+8+2*h, c+2*h, s+2*h, conj, TM+2*h, TM+8+2*h)
        for h in range(4):
            e(f"v_cvt_pk_bf16_f32 v{PK+h}, v{TM+2*h}, v{TM+2*h+1}")
            e(f"v_cvt_pk_bf16_f32 v{PK+4+h}, v{TM+8+2*h}, v{TM+9+2*h}")
    mulpack(TC, TS, False)
    Br, Bi = vr(PK), vr(PK+4)
    def stage32(sr, si):
        for j in range(2):
            e(f"{MF} {vr(Ar(j))}, {vr(C3+4*j)}, {Br}, 0")
            e(f"{MF} {vr(Ai(j))}, {vr(C3+4*j)}, {Bi}, 0")
        for j in range(2):
            e(f"{MF} {vr(Ar(j))}, {vr(sr+4*j)}, {Bi}, {vr(Ar(j))}")
            e(f"{MF} {vr(Ai(j))}, {vr(si+4*j)}, {Br}, {vr(Ai(j))}")
    stage32(S3, N3)
    mulpack(WR, WI, True)
    stage32(N3, S3)
    e(f"""
    v_lshlrev_b32 v7, 6, v5
    v_lshl_add_u32 v7, v3, 3, v7
    v_bfe_u32 v8, v1, 2, 2
    v_lshl_add_u32 v8, v3, 3, v8
    v_lshlrev_b32 v8, 6, v8
    v_and_b32 v9, 3, v1
    v_lshl_add_u32 v8, v9, 3, v8
    """)
    mulpack(TC, TS, True)
    p(f"v_add_u32 v7, {UL}, v7")
    p(f"v_add_u32 v8, {UL}, v8")
    for part in range(2):
        for jb in range(2):
            p(f"ds_write_b64 v7, {vr(PK+4*part+2*jb,2)} offset:{part*4096+jb*32}")
    p("s_waitcnt lgkmcnt(0)")
    p("s_barrier")
    UF = YF
    for ks in range(2):
        for part in range(2):
            for jb in range(2):
                for h in range(2):
                    p(f"ds_read_b64_tr_b16 {vr(UF+16*part+8*jb+4*ks+2*h,2)}, v8 offset:{part*4096+ks*2048+h*256+jb*32}")
        p.tag_lg(("u", ks))
    e(f"""
    s_lshl_b32 s33, s30, 2
    v_add_u32 v9, s33, v3
    v_and_b32 v10, 14, v2
    v_xor_b32 v9, v9, v10
    v_lshlrev_b32 v9, 3, v9
    v_lshl_add_u32 v9, v2, 7, v9
    v_add_u32 v9, {ZL}, v9
    """)
    ur = lambda j, ks: vr(UF+8*j+4*ks); ui = lambda j, ks: vr(UF+16+8*j+4*ks)
    for ks in range(2):
        p.wait(lg=("u", ks))
        for j in range(2):
            e(f"{MF} {vr(Ar(j))}, {vr(FC+4*ks)}, {ur(j,ks)}, {'0' if ks == 0 else vr(Ar(j))}")
            e(f"{MF} {vr(Ai(j))}, {vr(FC+4*ks)}, {ui(j,ks)}, {'0' if ks == 0 else vr(Ai(j))}")
        for j in range(2):
            e(f"{MF} {vr(Ar(j))}, {vr(FN+4*ks)}, {ui(j,ks)}, {vr(Ar(j))}")
            e(f"{MF} {vr(Ai(j))}, {vr(FS+4*ks)}, {ur(j,ks)}, {vr(Ai(j))}")
    e(f"""
    s_and_b32 s33, s2, 1
    s_bfe_u32 s34, s2, 0x10002
    s_lshl_b32 s34, s34, 1
    s_or_b32 s33, s33, s34
    s_lshl_b32 s33, s33, 1
    v_and_b32 v10, 7, v1
    v_xor_b32 v10, s33, v10
    v_lshrrev_b32 v12, 4, v1
    v_xor_b32 v10, v10, v12
    v_lshlrev_b32 v10, 4, v10
    v_lshrrev_b32 v12, 3, v1
    v_lshl_add_u32 v10, v12, 7, v10
    s_lshl_b32 s33, s30, 11
    s_add_u32 s34, s33, {ZL}
    v_add_u32 v10, s34, v10
    v_xor_b32 v12, 64, v10
    s_add_u32 s33, s33, s36
    s_add_u32 s33, s33, {Z_OFF:#x}
    """)
    for q in range(8):
        e(f"v_cvt_pk_bf16_f32 v{PK+q}, v{AC+2*q}, v{AC+2*q+1}")
    for part in range(2):
        for jb in range(2):
            p(f"ds_write_b64 v9, {vr(PK+4*part+2*jb,2)} offset:{part*4096+jb*2048}")
    sd.flush()
    p.wait(vm=("ch", 0), lg=0)
    p("s_barrier")
    stamp(p, 3)
    p(f"""
    ds_read_b128 {vr(TM)}, v10
    ds_read_b128 {vr(TM+4)}, v12 offset:1024
    """)
    p.tag_lg("z")
    p(f"""
    v_lshrrev_b32 v7, 2, v1
    v_mul_u32_u24 v7, 224, v7
    v_and_b32 v8, 3, v1
    v_lshl_add_u32 v7, v8, 3, v7
    v_add_u32 v8, {8*7168}, v7
    """)
    def wreads(s):
        out = []
        for u in range(7):
            for h in range(2):
                out.append(f"ds_read_b64_tr_b16 {vr(WB+28*(s&1)+4*u+2*h,2)}, v{7+(s>>3)} offset:{W1L+(s&7)*7168+h*3584+u*32}")
        return out
    for l in wreads(0): p(l)
    p.tag_lg(("w", 0))
    p.wait(lg="z")
    p(f"""
    buffer_store_dwordx4 {vr(TM)}, v4, s[24:27], s33 offen{ST}
    buffer_store_dwordx4 {vr(TM+4)}, v4, s[24:27], s33 offen offset:1024{ST}
    """)
    p(f"""
    s_mov_b32 s48, 0x05040100
    s_mov_b32 s49, 0x07060302
    v_lshrrev_b32 v9, 5, v0
    v_mul_u32_u24 v9, {56*4096}, v9
    v_bfe_u32 v10, v0, 4, 1
    v_lshl_add_u32 v9, v10, 11, v9
    v_bfe_u32 v10, v0, 1, 1
    v_lshl_add_u32 v9, v10, 10, v9
    v_bfe_u32 v10, v0, 2, 2
    v_lshl_add_u32 v9, v10, 6, v9
    v_and_b32 v10, 1, v0
    v_lshl_add_u32 v9, v10, 5, v9
    s_lshl_b32 s50, s47, 12
    s_and_b32 s51, s2, 3
    s_lshl_b32 s51, s51, 8
    s_add_u32 s50, s50, s51
    s_add_u32 s50, s50, {W2T_OFF:#x}
    s_cmp_lt_u32 s2, 224
    s_cselect_b32 s50, s50, 0x7ff00000
    """)
    p.wait(vm="w2")
    for q in range(2):
        for m in range(4):
            p(f"v_perm_b32 v{W2O+4*q+m}, v{W2I+2*m+1}, v{W2I+2*m}, s{48+q}")
    p(f"buffer_store_dwordx4 {vr(W2O)}, v9, s[24:27], s50 offen")
    p(f"buffer_store_dwordx4 {vr(W2O+4)}, v9, s[24:27], s50 offen offset:16")
    for s in range(16):
        nxt = []
        if s < 15:
            if (s + 1) % 4 == 0:
                p.wait(vm=("ch", (s+1)//4))
                p("s_barrier")
            nxt = wreads(s + 1)
        p.wait(lg=("w", s))
        k = 0
        for u in range(7):
            for jj in range(2):
                acc = vr(HA+28*jj+4*u)
                p(f"{MF} {acc}, {vr(WB+28*(s&1)+4*u)}, {ar((jj*16+s)*4)}, {'0' if s == 0 else acc}")
                if k < len(nxt): p(nxt[k]); k += 1
        p.tag_lg(("w", s+1))
    stamp(p, 4)
    p(f"""
    s_mov_b32 s40, {f32(-1.4426950408889634)}
    s_mov_b32 s41, s40
    s_mov_b32 s42, 1.0
    s_mov_b32 s43, 1.0
    s_lshr_b32 s33, s30, 1
    s_lshl_b32 s34, s28, 1
    s_add_u32 s33, s33, s34
    s_mul_i32 s33, s33, 56
    s_lshr_b32 s34, s29, 1
    s_mul_i32 s34, s34, 7
    s_add_u32 s33, s33, s34
    s_lshl_b32 s33, s33, 12
    s_and_b32 s34, s30, 1
    s_lshl_b32 s34, s34, 11
    s_add_u32 s33, s33, s34
    s_add_u32 s33, s33, {H_OFF:#x}
    s_and_b32 s34, s29, 1
    s_mul_i32 s35, s34, {3*4096}
    s_add_u32 s35, s35, s33
    s_lshl_b32 s34, s34, 3
    s_add_u32 s33, s33, s34
    s_add_u32 s33, s33, {6*4096}
    """)
    T0 = 16
    groups = [(jj, u) for u in range(7) for jj in range(2)]
    OUT = 80
    for gi, (jj, u) in enumerate(groups):
        a = HA+28*jj+4*u
        t = T0 + 4*(gi & 3)
        o = OUT + 16*jj + 2*u
        p(f"""
        v_pk_mul_f32 {vr(t,2)}, {vr(a,2)}, s[40:41]
        v_pk_mul_f32 {vr(t+2,2)}, {vr(a+2,2)}, s[40:41]
        v_exp_f32 v{t}, v{t}
        v_exp_f32 v{t+1}, v{t+1}
        v_exp_f32 v{t+2}, v{t+2}
        v_exp_f32 v{t+3}, v{t+3}
        v_pk_add_f32 {vr(t,2)}, {vr(t,2)}, s[42:43]
        v_pk_add_f32 {vr(t+2,2)}, {vr(t+2,2)}, s[42:43]
        v_rcp_f32 v{t}, v{t}
        v_rcp_f32 v{t+1}, v{t+1}
        v_rcp_f32 v{t+2}, v{t+2}
        v_rcp_f32 v{t+3}, v{t+3}
        v_pk_mul_f32 {vr(t,2)}, {vr(t,2)}, {vr(a,2)}
        v_pk_mul_f32 {vr(t+2,2)}, {vr(t+2,2)}, {vr(a+2,2)}
        v_cvt_pk_bf16_f32 v{o}, v{t}, v{t+1}
        v_cvt_pk_bf16_f32 v{o+1}, v{t+2}, v{t+3}
        """)
        if u in (1, 3, 5):
            if jj == 0 and u > 1: p("s_add_u32 s35, s35, 0x1000")
            p(f"buffer_store_dwordx4 {vr(o-2)}, v4, s[24:27], s35 offen offset:{1024*jj}{ST}")
        if u == 6:
            p(f"buffer_store_dwordx2 {vr(o,2)}, v4, s[24:27], s33 offen offset:{1024*jj}{ST}")
    stamp(p, 5)
    stamp_end(p, 6, 1)
    p("L_end_k2:")
    return kernel_text("k2_kernel", p, 256, 128)


def k3():
    p = Prog(); p.name = "k3"
    stamp_begin(p)
    p("""
    s_load_dwordx2 s[4:5], s[0:1], 0
    s_load_dwordx2 s[6:7], s[0:1], 48
    s_load_dwordx2 s[10:11], s[0:1], 64
    """)
    prologue(p)
    GL, ZL, XL, RL, OL = 0, 65536, 131072, 0, 131072
    GA, SA, TM, XV = 16, 80, 96, 128
    ZF, GF = 136, 144
    DEPTH = 8
    ring = lambda n: 32 * (n % DEPTH)
    p(f"""
    s_and_b32 s28, s2, 7
    s_lshl_b32 s28, s28, 2
    s_bfe_u32 s31, s2, 0x20003
    s_add_u32 s28, s28, s31            ; tb
    s_lshr_b32 s29, s2, 5              ; db
    v_lshlrev_b32 v4, 4, v1            ; lane*16
    v_lshrrev_b32 v5, 3, v1
    v_lshlrev_b32 v6, 12, v5
    v_and_b32 v7, 7, v1
    v_lshl_add_u32 v6, v7, 4, v6       ; row*4096 + c*16
    s_lshl_b32 s36, s30, 15            ; w*8 rows*4096
    s_lshl_b32 s33, s28, 7
    s_add_u32 s36, s36, s33
    s_add_u32 s36, s36, {Z_OFF:#x}
    s_lshl_b32 s37, s30, 10
    s_add_u32 s37, s37, {ZL}
    v_lshlrev_b32 v8, 15, v5
    v_lshl_add_u32 v8, v7, 4, v8
    s_lshl_b32 s38, s30, 19
    s_lshl_b32 s33, s28, 10
    s_add_u32 s38, s38, s33
    s_lshl_b32 s33, s29, 7
    s_add_u32 s38, s38, s33
    s_add_u32 s39, s38, 0x40000
    s_lshl_b32 s40, s30, 11
    s_add_u32 s40, s40, {XL}
    s_mul_i32 s41, s31, 3
    s_lshl_b32 s33, s29, 1
    s_add_u32 s41, s41, s33            ; 0..23
    s_sub_u32 s33, s41, 14
    s_cmp_ge_u32 s41, 14
    s_cselect_b32 s41, s33, s41
    s_mul_i32 s42, s28, 56
    s_mul_i32 s33, s30, 14
    s_add_u32 s42, s42, s33
    s_lshl_b32 s42, s42, 12
    s_add_u32 s42, s42, {H_OFF:#x}
    s_mul_i32 s43, s29, 56
    s_add_u32 s43, s43, s33
    s_lshl_b32 s43, s43, 12
    s_add_u32 s43, s43, {W2T_OFF:#x}
    s_lshl_b32 s41, s41, 12
    s_waitcnt lgkmcnt(0)
    """)
    stamp(p, 1)
    srd(p, 24, 10, WS_BYTES)
    srd(p, 12, 4, 2*MB)
    srd(p, 16, 6, 2*MB)
    sd = Side(p, 64)
    for m in range(16):
        def f(m=m):
            p(f"s_add_u32 m0, s37, {4096*m}")
            p(f"s_add_u32 s52, s36, {0x20000*m:#x}")
            p(f"buffer_load_dwordx4 v6, s[24:27], s52 offen lds")
            if m == 15: p.tag_vm("Z")
        sd.add(f)
    def kb_loads(n):
        def mk(q):
            def f():
                if q == 0:
                    p(f"""
                    s_add_u32 s44, s42, s41
                    s_add_u32 s45, s43, s41
                    s_add_u32 s41, s41, 0x1000
                    s_cmp_eq_u32 s41, {14*4096}
                    s_cselect_b32 s41, 0, s41
                    """)
                p(f"buffer_load_dwordx4 {ar(ring(n)+4*q)}, v4, s[24:27], s{44+(q>>2)} offen offset:{1024*(q&3)}")
                if q == 7: p.tag_vm(("kb", n))
            return f
        return [mk(q) for q in range(8)]
    def xl():
        p(f"""
        s_mov_b32 m0, s40
        buffer_load_dwordx4 v8, s[12:15], s38 offen lds
        s_add_u32 m0, s40, 1024
        buffer_load_dwordx4 v8, s[12:15], s39 offen lds
        """)
        p.tag_vm("x")
    sd.add(xl)
    for n in range(DEPTH):
        for f in kb_loads(n): sd.add(f)
    sd.flush(4)
    e = sd.emit
    e(f"""
    s_lshl_b32 s33, s29, 6
    s_lshr_b32 s34, s30, 1
    s_lshl_b32 s34, s34, 5
    s_add_u32 s33, s33, s34
    s_and_b32 s34, s30, 1
    s_lshl_b32 s34, s34, 2
    s_add_u32 s33, s33, s34
    v_lshrrev_b32 v9, 2, v2
    v_lshl_add_u32 v9, v9, 3, s33
    v_and_b32 v10, 3, v2
    v_add_u32 v9, v9, v10              ; d
    v_cvt_f32_u32 v9, v9
    v_mul_f32 v10, {f32(-1/512)}, v9   ; -delta
    v_lshlrev_b32 v11, 2, v3
    v_cvt_f32_u32 v11, v11
    v_mul_f32 v11, v11, v10            ; angle = -4g d/512
    v_mul_f32 v12, {f32(13.0)}, v10
    v_mul_f32 v13, -0.5, v9
    v_cmp_eq_u32 vcc, 0, v3
    v_cndmask_b32 v13, v11, v13, vcc
    s_lshl_b32 s33, s30, 10
    v_add_u32 v14, s33, v4
    """)
    for ks in range(16):
        T = TM + 12 * (ks & 1)
        for m in range(4):
            src = 13 if (ks == 0 and m == 0) else 11
            e(f"v_cos_f32 v{T+2*m}, v{src}")
            e(f"v_sin_f32 v{T+2*m+1}, v{src}")
            if not (ks == 15 and m == 3): e(f"v_add_f32 v11, v11, v{12 if m == 3 else 10}")
        for m in range(4):
            e(f"v_cvt_pk_bf16_f32 v{T+8+m}, v{T+2*m}, v{T+2*m+1}")
        e(f"ds_write_b128 v14, {vr(T+8)} offset:{GL+ks*4096}")
    e(f"""
    v_bfe_u32 v9, v1, 3, 2
    v_xor_b32 v9, s30, v9
    v_lshlrev_b32 v9, 5, v9
    v_and_b32 v10, 3, v1
    v_lshl_add_u32 v9, v10, 3, v9
    v_bfe_u32 v10, v1, 2, 2
    v_lshl_add_u32 v10, v3, 3, v10
    v_lshl_add_u32 v9, v10, 7, v9
    v_add_u32 v9, {ZL}, v9
    """)
    stamp(p, 2)
    p.wait(vm="Z", lg=0)
    p("s_barrier")
    stamp(p, 3)
    def ireads(ks):
        o = [f"ds_read_b64_tr_b16 {vr(ZF+4*(ks&1)+2*h,2)}, v9 offset:{ks*4096+h*512}" for h in range(2)]
        o += [f"ds_read_b128 {vr(GF+16*(ks&1)+4*ds)}, v4 offset:{GL+ks*4096+ds*1024}" for ds in range(4)]
        return o
    for l in ireads(0): p(l)
    p.tag_lg(("i", 0))
    for ks in range(16):
        if ks < 15:
            for l in ireads(ks+1): e(l)
        p.wait(lg=("i", ks))
        p.tag_lg(("i", ks+1))
        for ds in range(4):
            acc = vr(SA+4*ds)
            e(f"{MF} {acc}, {vr(GF+16*(ks&1)+4*ds)}, {vr(ZF+4*(ks&1))}, {'0' if ks == 0 else acc}")
    sd.flush()
    p("s_barrier")
    p(f"""
    v_lshlrev_b32 v10, 7, v2
    v_lshl_add_u32 v10, v3, 4, v10
    v_add_u32 v10, s40, v10
    """)
    p.wait(vm="x")
    p(f"ds_read_b128 {vr(XV)}, v10")
    p(f"ds_read_b128 {vr(XV+4)}, v10 offset:64")
    stamp(p, 4)
    for n in range(14):
        p.wait(vm=("kb", n))
        for i in range(4):
            for ds in range(4):
                acc = vr(GA+16*i+4*ds)
                p(f"{MF} {acc}, {ar(ring(n)+16+4*ds)}, {ar(ring(n)+4*i)}, {'0' if n == 0 else acc}")
        if n + DEPTH < 14:
            for f in kb_loads(n + DEPTH): f()
        if n == 0:
            p("s_waitcnt lgkmcnt(0)")
            for q in range(8):
                p(f"v_cvt_pk_bf16_f32 v{TM}, v{SA+2*q}, v{SA+2*q+1}")
                p(f"v_lshlrev_b32 v{SA+2*q}, 16, v{TM}")
                p(f"v_and_b32 v{SA+2*q+1}, 0xffff0000, v{TM}")
            for q in range(8):
                p(f"v_lshlrev_b32 v{GF+2*q}, 16, v{XV+q}")
                p(f"v_and_b32 v{GF+2*q+1}, 0xffff0000, v{XV+q}")
            p(f"""
            s_mov_b32 s46, {f32(-1.4426950408889634)}
            s_mov_b32 s47, s46
            s_mov_b32 s48, 1.0
            s_mov_b32 s49, 1.0
            s_lshl_b32 s33, s30, 12
            v_add_u32 v11, s33, v4
            s_lshl_b32 s33, s30, 14
            v_add_u32 v12, s33, v4
            v_add_u32 v13, s40, v4
            """)
    stamp(p, 5)
    for i in range(4):
        for ds in range(4):
            p(f"ds_write_b128 v11, {vr(GA+16*i+4*ds)} offset:{RL+i*16384+ds*1024}")
    p("s_waitcnt lgkmcnt(0)")
    p("s_barrier")
    for src in range(4):
        for ds in range(4):
            p(f"ds_read_b128 {vr(GA+16*src+4*ds)}, v12 offset:{RL+src*4096+ds*1024}")
    p("s_waitcnt lgkmcnt(0)")
    stamp(p, 6)
    for q in range(8):
        a = GA + 2*q
        p(f"v_pk_add_f32 {vr(a,2)}, {vr(a,2)}, {vr(a+16,2)}")
        p(f"v_pk_add_f32 {vr(a+32,2)}, {vr(a+32,2)}, {vr(a+48,2)}")
    for q in range(8):
        a = GA + 2*q
        p(f"v_pk_add_f32 {vr(a,2)}, {vr(a,2)}, {vr(a+32,2)}")
    T = GA + 16
    for q in range(8): p(f"v_pk_mul_f32 {vr(T+2*q,2)}, {vr(GA+2*q,2)}, s[46:47]")
    for q in range(16): p(f"v_exp_f32 v{T+q}, v{T+q}")
    for q in range(8): p(f"v_pk_add_f32 {vr(T+2*q,2)}, {vr(T+2*q,2)}, s[48:49]")
    for q in range(16): p(f"v_rcp_f32 v{T+q}, v{T+q}")
    for q in range(8): p(f"v_pk_mul_f32 {vr(T+2*q,2)}, {vr(T+2*q,2)}, {vr(GA+2*q,2)}")
    for q in range(8): p(f"v_pk_fma_f32 {vr(T+2*q,2)}, {vr(T+2*q,2)}, {vr(SA+2*q,2)}, {vr(GF+2*q,2)}")
    for q in range(8): p(f"v_cvt_pk_bf16_f32 v{TM+q}, v{T+2*q}, v{T+2*q+1}")
    p(f"""
    ds_write_b128 v10, {vr(TM)}
    ds_write_b128 v10, {vr(TM+4)} offset:64
    s_waitcnt lgkmcnt(0)
    ds_read_b128 {vr(TM+8)}, v13
    ds_read_b128 {vr(TM+12)}, v13 offset:1024
    s_waitcnt lgkmcnt(1)
    buffer_store_dwordx4 {vr(TM+8)}, v8, s[16:19], s38 offen
    s_waitcnt lgkmcnt(0)
    buffer_store_dwordx4 {vr(TM+12)}, v8, s[16:19], s39 offen
    """)
    stamp(p, 7)
    stamp_end(p, 8, 2)
    p("L_end_k3:")
    return kernel_text("k3_kernel", p, 176, 256)

HEADER = open("cdna_kernels/" + NAME + ".s.ref").read().split("; Override")[0]

def build(kernels, path):
    txt = HEADER
    for name, lds, _ in kernels:
        txt += f"; @launch kernel={name} grid=(256,1,1) block=(256,1,1) lds={lds}\n"
    txt += '.amdgcn_target "amdgcn-amd-amdhsa--gfx950"\n'
    for _, _, body in kernels:
        txt += body
    open(path, "w").write(txt)

if __name__ == "__main__":
    STAMPS = "--stamps" in sys.argv
    build([("k1_kernel", 98304, k1()), ("k2_kernel", 131072, k2()), ("k3_kernel", 139264, k3())], "v1.s")
```

```python
import sys
from asmgen import *
MB = 1<<20
src = open(sys.argv[1]).read()
NAME = "recurrent_scan__spectral_gfnet__dense_activation_silu__prompt_kernel"
def toucher(name, stride_log2, code=False):
    p = Prog()
    p(f"""
    s_load_dwordx4 s[44:47], s[0:1], 0
    s_load_dwordx2 s[48:49], s[0:1], 16
    s_load_dwordx4 s[52:55], s[0:1], 32
    s_load_dwordx2 s[56:57], s[0:1], 48
    s_load_dwordx2 s[60:61], s[0:1], 64
    s_cmp_ge_u32 s2, 256
    s_cbranch_scc1 L_end_{name}
    s_lshr_b32 s3, s2, 3
    s_lshl_b32 s3, s3, 8
    v_add_u32 v1, s3, v0
    v_lshlrev_b32 v1, {stride_log2}, v1
    s_waitcnt lgkmcnt(0)
    """)
    for i, (b, n) in enumerate([(44, 2*MB), (46, 2048*514), (48, 2048*514), (52, 512*1792*2), (54, 512*1792*2), (56, 2*MB), (60, 21*MB)]):
        srd(p, 4+4*i, b, n)
        p(f"buffer_load_dword v{2+i}, v1, s[{4+4*i}:{7+4*i}], 0 offen")
    p("s_waitcnt vmcnt(0)")
    p(f"L_end_{name}:")
    return kernel_text(name, p, 16)
def mk(out, k):
    L = [l for l in src.split("\n") if "@launch" in l][0]
    t = src.replace(L, f"; @launch kernel=t_kernel grid=(256,1,1) block=(256,1,1) lds=0\n; @launch kernel={NAME} grid=(256,1,1) block=(256,1,1) lds=163840")
    open(out, "w").write(t + k)
pe = Prog(); pe("s_nop 0")
mk("t0.s", kernel_text("t_kernel", pe, 16))
mk("t1.s", toucher("t_kernel", 12))
mk("t2.s", toucher("t_kernel", 16))
```

```python
import sys, struct
from asmgen import *

NAME = "recurrent_scan__spectral_gfnet__dense_activation_silu__prompt"
MB = 1 << 20
XN_OFF, Y_OFF, WT_OFF, Z_OFF, H_OFF = 0, 2*MB, 4*MB, 6*MB, 10*MB
WS_BYTES = 268435456
def f32(x): return "0x%08x" % struct.unpack("<I", struct.pack("<f", x))[0]
def vr(a, n=4, k="v"): return f"{k}[{a}:{a+n-1}]"
def ar(a, n=4): return vr(a, n, "a")
MF = "v_mfma_f32_16x16x32_bf16"
OPT = dict(stamps=False, st_far=" sc1", st_near="", pf=True, codepf=True)
STAMP_OFF = 64*MB

def stamp(p, i):
    if OPT["stamps"]: p(f"s_memtime s[{60+2*i}:{61+2*i}]")
def stamp_begin(p):
    if OPT["stamps"]:
        p("s_memrealtime s[56:57]")
        p("s_memtime s[60:61]")
def stamp_end(p, n, kidx, srd="s[24:27]", wave="s30"):
    if not OPT["stamps"]: return
    p("s_waitcnt vmcnt(0)")
    p(f"s_memtime s[{60+2*n}:{61+2*n}]")
    p("s_memrealtime s[58:59]")
    p("s_waitcnt lgkmcnt(0)")
    p(f"s_lshl_b32 s54, s2, 2")
    p(f"s_add_u32 s54, s54, {wave}")
    p(f"s_lshl_b32 s54, s54, 6")
    p(f"s_add_u32 s54, s54, {STAMP_OFF + kidx*65536:#x}")
    p("v_mov_b32 v0, 0")
    p("s_mov_b64 exec, 1")
    p("v_mov_b32 v1, s56"); p(f"buffer_store_dword v1, v0, {srd}, s54 offen")
    p("v_mov_b32 v2, s58"); p(f"buffer_store_dword v2, v0, {srd}, s54 offen offset:4")
    for i in range(1, n+1):
        p(f"s_sub_u32 s55, s{60+2*i}, s60")
        p(f"v_mov_b32 v{2+i}, s55")
        p(f"buffer_store_dword v{2+i}, v0, {srd}, s54 offen offset:{4+4*i}")

def prologue(p, lane="v1", t="v2", g="v3", wave="s30"):
    p(f"""
    s_cmp_ge_u32 s2, 256
    s_cbranch_scc1 L_end_{p.name}
    v_and_b32 {lane}, 63, v0
    v_lshrrev_b32 v4, 6, v0
    v_and_b32 {t}, 15, v0
    v_bfe_u32 {g}, v0, 4, 2
    v_readfirstlane_b32 {wave}, v4
    """)

def code_prefetch(p, first, last, vtmp, vdst, tag, back=False):
    if not OPT["codepf"]: return
    p(f"""
    s_getpc_b64 s[90:91]
    L_pc_{tag}:
    {"s_sub_u32 s90, s90, L_pc_%s-%s" % (tag, first) if back else "s_add_u32 s90, s90, %s-L_pc_%s" % (first, tag)}
    {"s_subb_u32 s91, s91, 0" if back else "s_addc_u32 s91, s91, 0"}
    v_lshlrev_b32 {vtmp}, 7, v0
    v_min_u32 {vtmp}, {last}-{first}-4, {vtmp}
    global_load_dword {vdst}, {vtmp}, s[90:91]
    """)

def pf_setup(p, vreg, nl):
    p(f"""
    s_mul_i32 s53, s30, {nl*128}
    v_lshlrev_b32 {vreg}, 7, v1
    v_add_u32 {vreg}, s53, {vreg}
    v_cmp_gt_u32 vcc, {nl}, v1
    v_mov_b32 v255, 0x7ff00000
    v_cndmask_b32 {vreg}, v255, {vreg}, vcc
    """.replace("v255", p.scratch))

def cost(l):
    op = l.strip().split()[0]
    if op.startswith("v_mfma"): return 16
    if op.replace("_e32", "") in TRANS: return 8
    if op.startswith("s_waitcnt") or op.startswith("s_barrier"): return 4
    if op.startswith("s_"): return 2
    return 4

class Side:
    def __init__(self, p, gap): self.p = p; self.q = []; self.gap = gap; self.acc = 0
    def add(self, f): self.q.append(f)
    def emit(self, text):
        for l in text.strip("\n").split("\n"):
            l = l.strip()
            if not l or l.startswith(";"): continue
            self.p(l); self.acc += cost(l)
            if self.acc >= self.gap and self.q:
                self.q.pop(0)(); self.acc = 0
    def flush(self, n=None):
        while self.q and (n is None or n > 0):
            self.q.pop(0)()
            if n is not None: n -= 1
        self.acc = 0

def weave(p, a, b, ratio):
    bi = 0
    for x in a:
        p(x)
        for _ in range(ratio):
            if bi < len(b): p(b[bi]); bi += 1
    while bi < len(b): p(b[bi]); bi += 1

def lines(t): return [l.strip() for l in t.strip().split("\n") if l.strip() and not l.strip().startswith(";")]

def k1():
    p = Prog(); p.name = "k1"
    stamp_begin(p)
    p("""
    s_load_dwordx4 s[4:7], s[0:1], 0
    s_load_dwordx2 s[8:9], s[0:1], 16
    s_load_dwordx2 s[10:11], s[0:1], 64
    s_load_dwordx2 s[44:45], s[0:1], 32
    """)
    prologue(p)
    code_prefetch(p, "k1_kernel", "L_end_k1", "v5", "v179", "k1a", back=True)
    FL, XL, WL, YL = 0, 32768, 98304, 106496
    XF, E, O, WT = 64, 128, 144, 160
    p(f"""
    s_and_b32 s28, s2, 7
    s_lshl_b32 s28, s28, 2
    s_bfe_u32 s29, s2, 0x20003
    s_add_u32 s28, s28, s29            ; tb
    s_lshr_b32 s29, s2, 5              ; kg
    s_lshl_b32 s36, s30, 14
    s_add_u32 s36, s36, {XL}
    s_lshl_b32 s32, s30, 19
    s_lshl_b32 s31, s28, 10
    s_add_u32 s32, s32, s31
    s_lshl_b32 s33, s28, 6
    s_lshl_b32 s34, s30, 4
    s_add_u32 s33, s33, s34
    v_lshrrev_b32 v7, 2, v1
    v_add_u32 v8, s33, v7              ; s'
    v_mul_u32_u24 v8, 514, v8
    v_and_b32 v9, 3, v1                ; c
    s_lshl_b32 s34, s29, 6
    s_add_u32 s34, s34, 2
    v_lshl_add_u32 v10, v9, 4, s34
    v_add_u32 v8, v8, v10              ; W source
    s_lshl_b32 s33, s29, 6
    s_lshl_b32 s34, s30, 4
    s_add_u32 s33, s33, s34
    v_add_u32 v11, s33, v2             ; k'
    v_lshrrev_b32 v12, 1, v11
    v_cmp_eq_u32 vcc, 0, v12
    v_mov_b32 v13, 0x100
    v_cndmask_b32 v12, v12, v13, vcc
    v_cvt_f32_u32 v13, v12
    v_mul_f32 v13, {f32(1/512)}, v13   ; delta
    v_and_b32 v14, 1, v11
    v_cvt_f32_u32 v14, v14
    v_mul_f32 v14, 0.25, v14
    s_lshl_b32 s33, s29, 6
    v_lshl_add_u32 v15, v3, 3, s33
    v_cvt_f32_u32 v15, v15
    v_fma_f32 v14, v15, v13, v14
    v_fract_f32 v14, v14
    v_mul_f32 v15, {f32(25.0)}, v13
    v_lshlrev_b32 v16, 4, v1
    s_lshl_b32 s33, s30, 10
    v_add_u32 v17, s33, v16
    """)
    def gen(ks, e):
        T = 20 + 12 * (ks & 1)
        for i in range(8):
            e(f"v_cos_f32 v{T+i}, v14")
            e(f"v_add_f32 v14, v14, v{15 if i == 7 else 13}")
        for q in range(4):
            e(f"v_cvt_pk_bf16_f32 v{T+8+q}, v{T+2*q}, v{T+2*q+1}")
        e(f"ds_write_b128 v17, {vr(T+8)} offset:{FL+ks*4096}")
    XA = XF
    p("""
    v_lshrrev_b32 v5, 5, v1
    v_and_b32 v6, 31, v1
    s_lshl_b32 s33, s29, 3
    """)
    for n in range(8):
        p(f"""
        s_add_u32 s{80+n}, s29, {n}
        s_and_b32 s{80+n}, s{80+n}, 7
        s_lshl_b32 s34, s{80+n}, 1
        v_add_u32 v20, s34, v5
        v_xor_b32 v21, v20, v6
        v_add_u32 v21, s33, v21
        v_and_b32 v21, 63, v21
        v_lshlrev_b32 v21, 4, v21
        v_lshl_add_u32 v{XA+n}, v20, 15, v21
        v_xor_b32 v{XA+8+n}, 0x200, v{XA+n}
        s_lshl_b32 s{80+n}, s{80+n}, 10
        s_add_u32 s{80+n}, s{80+n}, s36
        """)
    gen(0, p)
    p("s_waitcnt lgkmcnt(0)")
    stamp(p, 1)
    srd(p, 12, 4, 2*MB)
    for h in range(2):
        for n in range(8):
            p(f"s_add_u32 m0, s{80+n}, {8192*h}")
            p(f"buffer_load_dwordx4 v{XA+8*h+n}, s[12:15], s32 offen lds")
        p.tag_vm(("x", h))
    stamp(p, 8)
    srd(p, 16, 6, 2048*514)
    srd(p, 20, 8, 2048*514)
    srd(p, 24, 10, WS_BYTES)
    srd(p, 40, 44, 512*1792*2)
    for ks in range(1, 8): gen(ks, p)
    stamp(p, 2)
    p("s_waitcnt lgkmcnt(0)")
    p("s_barrier")
    stamp(p, 3)
    for ks in range(8):
        for u in range(4):
            p(f"ds_read_b128 {ar(16*ks+4*u)}, v16 offset:{FL+ks*4096+u*1024}")
    p(f"""
    v_xor_b32 v19, v2, v3
    v_lshlrev_b32 v19, 4, v19
    v_lshl_add_u32 v19, v2, 9, v19
    v_add_u32 v19, s36, v19
    v_xor_b32 v40, 64, v19
    v_xor_b32 v41, 0x80, v19
    v_xor_b32 v42, 0xc0, v19
    v_bfe_u32 v18, v2, 1, 1
    v_cvt_f32_u32 v18, v18
    v_fma_f32 v18, v18, -2.0, 1.0          ; sign
    s_mov_b32 s35, 0x3f803f80
    v_mov_b32 v44, 0
    v_mov_b32 v45, 0
    v_mov_b32 v46, 0
    v_mov_b32 v47, 0
    s_lshl_b32 s33, s30, 4
    v_add_u32 v53, s33, v7
    v_lshlrev_b32 v54, 3, v9
    v_xor_b32 v53, v53, v54
    v_lshlrev_b32 v53, 2, v53
    v_lshl_add_u32 v53, v9, 11, v53
    v_add_u32 v53, {WL}, v53
    ; WT LDS read addr v55: row k = 8w + 4n + g, chunk t at position t ^ (2w)
    s_lshl_b32 s33, s30, 1
    v_xor_b32 v55, s33, v2
    v_lshlrev_b32 v55, 4, v55
    v_lshl_add_u32 v55, v3, 8, v55
    s_lshl_b32 s33, s30, 11
    s_add_u32 s33, s33, {WL}
    v_add_u32 v55, s33, v55
    s_mov_b32 s48, 0x05040100
    s_mov_b32 s49, 0x07060302
    s_lshl_b32 s33, s29, 5
    s_lshl_b32 s34, s30, 3
    s_add_u32 s33, s33, s34
    s_add_u32 s33, s33, 1
    v_add_u32 v57, s33, v3
    v_add_u32 v58, 4, v57
    v_and_b32 v57, 255, v57
    v_and_b32 v58, 255, v58
    v_lshlrev_b32 v57, 13, v57
    v_lshlrev_b32 v58, 13, v58
    v_lshl_add_u32 v57, v2, 4, v57
    v_lshl_add_u32 v58, v2, 4, v58
    s_lshl_b32 s37, s28, 8
    s_add_u32 s37, s37, {WT_OFF:#x}
    s_lshl_b32 s38, s28, 2
    s_add_u32 s38, s38, s30
    s_lshl_b32 s38, s38, 4
    s_lshl_b32 s34, s29, 1
    s_add_u32 s38, s38, s34
    s_lshl_b32 s38, s38, 10
    s_lshl_b32 s33, s29, 6
    v_add_u32 v59, s33, v2
    v_cmp_gt_u32 vcc, 2, v59
    v_mov_b32 v52, 1.0
    v_cndmask_b32 v52, v52, 0.5, vcc
    s_lshl_b32 s33, s30, 2
    v_add_u32 v59, s33, v3
    v_and_b32 v60, 14, v2
    v_xor_b32 v59, v59, v60
    v_lshlrev_b32 v59, 3, v59
    v_lshl_add_u32 v59, v2, 7, v59
    v_add_u32 v59, {YL}, v59
    s_bfe_u32 s33, s28, 0x30001
    v_and_b32 v60, 7, v1
    v_xor_b32 v61, s33, v60
    v_xor_b32 v61, v61, v3
    v_lshlrev_b32 v61, 4, v61
    v_lshrrev_b32 v63, 3, v1
    v_lshl_add_u32 v61, v63, 7, v61
    s_lshl_b32 s33, s30, 11
    s_add_u32 s33, s33, {YL}
    v_add_u32 v61, s33, v61
    v_xor_b32 v62, 64, v61
    v_lshlrev_b32 v63, 12, v63
    v_lshl_add_u32 v63, v60, 4, v63
    s_lshl_b32 s39, s29, 6
    s_lshl_b32 s34, s30, 4
    s_add_u32 s39, s39, s34
    s_lshl_b32 s39, s39, 12
    s_lshl_b32 s34, s28, 7
    s_add_u32 s39, s39, s34
    s_add_u32 s39, s39, {Y_OFF:#x}
    s_add_u32 s46, s39, 0x8000
    v_lshlrev_b32 v43, 4, v3
    """)
    p(f"buffer_load_dwordx4 {vr(WT+8)}, v8, s[16:19], 0 offen")
    p(f"buffer_load_dwordx4 {vr(WT+12)}, v8, s[20:23], 0 offen")
    p.tag_vm("W")
    code_prefetch(p, "k2_kernel", "L_end_k2", "v20", "v176", "k1b")
    p.scratch = "v20"
    pf_setup(p, "v178", 14)
    p("s_lshr_b32 s47, s2, 3")
    p("s_mul_i32 s47, s47, 28672")
    def pfw1():
        if OPT["pf"]:
            p("buffer_load_dword v177, v178, s[40:43], s47 offen")
            p(f"s_add_u32 s47, s47, {56*128}")
    pfw1()
    def stats(ks):
        for q in range(4):
            p(f"v_dot2c_f32_bf16 v{44+(q&1)}, s35, v{XF+4*ks+q}")
            p(f"v_dot2c_f32_bf16 v{46+(q&1)}, v{XF+4*ks+q}, v{XF+4*ks+q}")
    def mfs(grp):
        out = []
        for ks in range(4*grp, 4*grp+4):
            A = E if ks < 8 else O
            for u in range(4):
                c = "0" if (ks & 7) == 0 else vr(A+4*u)
                out.append(f"{MF} {vr(A+4*u)}, {vr(XF+4*ks)}, {ar(16*(ks&7)+4*u)}, {c}")
        return out
    xa = lambda ks: (19, 40, 41, 42)[ks & 3]
    for h in range(2):
        p.wait(vm=("x", h))
        if h == 0: stamp(p, 4)
        for ks in range(8*h, 8*h+8):
            p(f"ds_read_b128 {vr(XF+4*ks)}, v{xa(ks)} offset:{8192*h + 256*((ks>>2)&1)}")
            if (ks & 3) == 3: p.tag_lg(("x", ks >> 2))
        for grp in (2*h, 2*h+1):
            p.wait(lg=("x", grp))
            for ks in range(4*grp, 4*grp+4): stats(ks)
            if grp < 3:
                for m in mfs(grp): p(m)
                pfw1()
    stamp(p, 5)
    fin = lines(f"""
    v_add_f32 v44, v44, v45
    v_add_f32 v46, v46, v47
    v_mov_b32 v45, v44
    v_mov_b32 v47, v46
    v_permlane32_swap_b32 v44, v45
    v_permlane32_swap_b32 v46, v47
    v_add_f32 v44, v44, v45
    v_add_f32 v46, v46, v47
    v_mov_b32 v45, v44
    v_mov_b32 v47, v46
    v_permlane16_swap_b32 v44, v45
    v_permlane16_swap_b32 v46, v47
    v_add_f32 v44, v44, v45
    v_add_f32 v46, v46, v47
    v_mul_f32 v44, {f32(1/512)}, v44
    v_mul_f32 v46, {f32(1/512)}, v46
    v_fma_f32 v46, -v44, v44, v46
    v_max_f32 v46, 0, v46
    v_cvt_pk_bf16_f32 v44, v44, v46
    v_and_b32 v46, 0xffff0000, v44
    v_lshlrev_b32 v44, 16, v44
    v_add_f32 v46, {f32(1e-5)}, v46
    v_cvt_pk_bf16_f32 v46, v46, v46
    v_lshlrev_b32 v46, 16, v46
    v_sqrt_f32 v46, v46
    v_cvt_pk_bf16_f32 v46, v46, v46
    v_lshlrev_b32 v46, 16, v46
    v_rcp_f32 v46, v46
    v_mul_f32 v47, {f32(2.0**-19)}, v46
    ds_bpermute_b32 v48, v43, v47
    ds_bpermute_b32 v49, v43, v47 offset:4
    ds_bpermute_b32 v50, v43, v47 offset:8
    ds_bpermute_b32 v51, v43, v47 offset:12
    """)
    weave(p, mfs(3), fin, 2)
    def xn(q):
        x = XF + q
        return f"""
        v_lshlrev_b32 v20, 16, v{x}
        v_and_b32 v21, 0xffff0000, v{x}
        v_sub_f32 v20, v20, v44
        v_sub_f32 v21, v21, v44
        v_cvt_pk_bf16_f32 v22, v20, v21
        v_lshlrev_b32 v20, 16, v22
        v_and_b32 v21, 0xffff0000, v22
        v_mul_f32 v20, v20, v46
        v_mul_f32 v21, v21, v46
        v_cvt_pk_bf16_f32 v{24+q}, v20, v21
        """
    for u in range(4):
        for r in range(4):
            p(f"v_fma_f32 v{E+4*u+r}, v{O+4*u+r}, v18, v{E+4*u+r}")
    for r in range(4): p(f"v_mul_f32 v{E+r}, v{E+r}, v52")
    p("s_waitcnt lgkmcnt(0)")
    for u in range(4):
        p(f"v_pk_mul_f32 {vr(E+4*u,2)}, {vr(E+4*u,2)}, v[48:49]")
        p(f"v_pk_mul_f32 {vr(E+4*u+2,2)}, {vr(E+4*u+2,2)}, v[50:51]")
        p(f"v_cvt_pk_bf16_f32 v{32+2*u}, v{E+4*u}, v{E+4*u+1}")
        p(f"v_cvt_pk_bf16_f32 v{33+2*u}, v{E+4*u+2}, v{E+4*u+3}")
        p(f"ds_write_b64 v59, {vr(32+2*u,2)} offset:{2048*u}")
    p.wait(vm="W")
    for e in range(8):
        p(f"v_perm_b32 v{WT+e}, v{WT+12+(e>>1)}, v{WT+8+(e>>1)}, s{48+(e&1)}")
        p(f"ds_write_b32 v53, v{WT+e} offset:{256*e}")
    for q in range(4): p(xn(q))
    p(f"""
    s_waitcnt lgkmcnt(0)
    s_barrier
    ds_read_b128 v[32:35], v61
    ds_read_b128 v[36:39], v62 offset:1024
    ds_read_b128 {vr(WT)}, v55
    ds_read_b128 {vr(WT+4)}, v55 offset:1024
    buffer_store_dwordx4 v[24:27], v16, s[24:27], s38 offen{OPT['st_near']}
    """)
    for q in range(4, 6): p(xn(q))
    p(f"""
    s_waitcnt lgkmcnt(0)
    buffer_store_dwordx4 v[32:35], v63, s[24:27], s39 offen{OPT['st_far']}
    buffer_store_dwordx4 v[36:39], v63, s[24:27], s46 offen{OPT['st_far']}
    buffer_store_dwordx4 {vr(WT)}, v57, s[24:27], s37 offen{OPT['st_far']}
    buffer_store_dwordx4 {vr(WT+4)}, v58, s[24:27], s37 offen{OPT['st_far']}
    """)
    for q in range(6, 8): p(xn(q))
    p(f"buffer_store_dwordx4 v[28:31], v16, s[24:27], s38 offen offset:1024{OPT['st_near']}")
    stamp(p, 6)
    stamp(p, 7)
    stamp_end(p, 9, 0)
    p("L_end_k1:")
    return kernel_text("k1_kernel", p, 180, 128)

def cmul(e, re, im, c, s, conj_tw, o_re, o_im):
    n = "neg_lo:[1,0,0] neg_hi:[1,0,0]"
    e(f"v_pk_mul_f32 {vr(o_re,2)}, {vr(re,2)}, {vr(c,2)}")
    e(f"v_pk_mul_f32 {vr(o_im,2)}, {vr(im,2)}, {vr(c,2)}")
    e(f"v_pk_fma_f32 {vr(o_re,2)}, {vr(im,2)}, {vr(s,2)}, {vr(o_re,2)}" + (" " + n if conj_tw else ""))
    e(f"v_pk_fma_f32 {vr(o_im,2)}, {vr(re,2)}, {vr(s,2)}, {vr(o_im,2)}" + ("" if conj_tw else " " + n))

def k2():
    p = Prog(); p.name = "k2"
    stamp_begin(p)
    p("""
    s_load_dwordx4 s[4:7], s[0:1], 32
    s_load_dwordx2 s[10:11], s[0:1], 64
    """)
    prologue(p)
    W1L, YL, UL, ZL = 0, 114688, 122880, 114688
    FC, FS, FN, C3, S3, N3, TC, TS = 16, 24, 32, 40, 48, 56, 64, 72
    WRAW, WR, WI, YF, AC, TM, PK, HA, WB = 80, 88, 96, 104, 136, 152, 168, 192, 16
    VD = 248
    p(f"""
    s_and_b32 s28, s2, 7
    s_lshl_b32 s28, s28, 1
    s_bfe_u32 s31, s2, 0x10003
    s_add_u32 s28, s28, s31
    s_lshr_b32 s29, s2, 4              ; cg = j>>1
    v_lshlrev_b32 v4, 4, v1
    s_lshl_b32 s36, s2, 13
    s_lshl_b32 s37, s30, 11
    s_add_u32 s38, s36, s37
    s_add_u32 s38, s38, {Y_OFF:#x}
    s_add_u32 s37, s37, {YL}
    s_lshl_b32 s33, s30, 4
    v_add_u32 v5, s33, v2              ; c = 16w+t
    v_lshlrev_b32 v6, 2, v5
    v_lshl_add_u32 v6, v3, 10, v6
    s_add_u32 s39, s36, {WT_OFF:#x}
    s_add_u32 s40, s39, 0x1000
    s_lshl_b32 s41, s28, 3
    s_lshl_b32 s33, s30, 1
    s_add_u32 s41, s41, s33
    s_lshl_b32 s41, s41, 14
    s_mul_i32 s42, s29, 224
    s_mul_i32 s33, s30, {32*3584}
    s_add_u32 s42, s42, s33
    s_mul_i32 s43, s30, 7168
    """)
    for j in range(7):
        p(f"""
        v_add_u32 v7, {64*j}, v1
        v_mul_u32_u24 v8, 4682, v7
        v_lshrrev_b32 v8, 16, v8
        v_mul_u32_u24 v9, 14, v8
        v_sub_u32 v7, v7, v9
        v_bfe_u32 v9, v8, 2, 2
        v_lshlrev_b32 v9, 3, v9
        v_and_b32 v10, 3, v8
        v_add_u32 v9, v9, v10
        v_lshrrev_b32 v10, 4, v8
        v_lshl_add_u32 v9, v10, 2, v9
        v_mul_u32_u24 v9, 3584, v9
        v_lshl_add_u32 v{VD+j}, v7, 4, v9
        """)
    p("s_waitcnt lgkmcnt(0)")
    stamp(p, 1)
    srd(p, 24, 10, WS_BYTES)
    p(f"""
    s_mov_b32 m0, s37
    buffer_load_dwordx4 v4, s[24:27], s38 offen lds
    buffer_load_dwordx4 v4, s[24:27], s38 offen offset:1024 lds
    """)
    p.tag_vm("Y")
    srd(p, 12, 4, 512*1792*2)
    srd(p, 16, 6, 512*1792*2)
    for jd in range(2):
        for r in range(4):
            p(f"buffer_load_dword v{WRAW+4*jd+r}, v6, s[24:27], s{39+jd} offen offset:{256*r}")
    p.tag_vm("WT")
    p.scratch = "v176"
    pf_setup(p, "v11", 7)
    p(f"""
    s_lshr_b32 s48, s2, 3
    s_mul_i32 s48, s48, 28672
    s_add_u32 s48, s48, {256*3584}
    s_lshr_b32 s49, s2, 6
    s_mul_i32 s49, s49, {448*1024}
    s_bfe_u32 s53, s2, 0x30003
    s_mul_i32 s53, s53, 28672
    s_add_u32 s49, s49, s53
    """)
    def pf1():
        if OPT["pf"]:
            p("buffer_load_dword v176, v11, s[12:15], s48 offen")
            p(f"s_add_u32 s48, s48, {28*128}")
    def pf2():
        if OPT["pf"]:
            p("buffer_load_dword v177, v11, s[16:19], s49 offen")
            p(f"s_add_u32 s49, s49, {28*128}")
    sd = Side(p, OPT.get("k2gap", 76))
    for c in range(4):
        def setup(c=c):
            p(f"""
            s_xor_b32 s52, s31, {c}
            s_lshl_b32 s44, s52, 12
            s_add_u32 s44, s44, s41
            s_add_u32 s45, s44, 0x4000
            s_mul_i32 s46, s52, {128*3584}
            s_add_u32 s46, s46, s42
            """)
        for j in range(7):
            def f(c=c, j=j, setup=setup):
                if j == 0: setup()
                p(f"s_add_u32 m0, s43, {W1L + c*4*7168 + j*1024}")
                p(f"buffer_load_dwordx4 v{VD+j}, s[12:15], s46 offen lds")
            sd.add(f)
        for q in range(4):
            for jj in range(2):
                def f(c=c, q=q, jj=jj):
                    p(f"buffer_load_dwordx4 {ar((jj*16+4*c+q)*4)}, v4, s[24:27], s{44+jj} offen offset:{1024*q}")
                    if q == 3 and jj == 1: p.tag_vm(("ch", c))
                sd.add(f)
    q2 = []
    for i, f in enumerate(sd.q):
        if i < 32 and i % 4 == 0:
            q2.append(lambda f=f: (pf1(), f()))
        else: q2.append(f)
    sd.q = q2
    sd.add(lambda: code_prefetch(p, "k3_kernel", "L_end_k3", "v178", "v178", "k2b"))
    e = sd.emit
    e(f"""
    v_cvt_f32_u32 v7, v5
    v_mul_f32 v8, {f32(1/64)}, v7
    v_lshlrev_b32 v9, 3, v3
    v_cvt_f32_u32 v9, v9
    v_mul_f32 v9, v9, v8
    v_mul_f32 v10, {f32(25.0)}, v8
    """)
    for ks in range(2):
        for i in range(8):
            e(f"v_cos_f32 v{TM+i}, v9")
            e(f"v_sin_f32 v{TM+8+i}, v9")
            e(f"v_add_f32 v9, v9, v{10 if i == 7 else 8}")
        for q in range(4):
            e(f"v_cvt_pk_bf16_f32 v{FC+4*ks+q}, v{TM+2*q}, v{TM+2*q+1}")
            e(f"v_cvt_pk_bf16_f32 v{FS+4*ks+q}, v{TM+8+2*q}, v{TM+9+2*q}")
            e(f"v_xor_b32 v{FN+4*ks+q}, 0x80008000, v{FS+4*ks+q}")
    e(f"""
    v_mul_f32 v8, {f32(1/2048)}, v7
    v_lshlrev_b32 v9, 2, v3
    v_cvt_f32_u32 v12, v9
    v_mul_f32 v9, v12, v8
    v_mul_f32 v10, {f32(13.0)}, v8
    """)
    for i in range(8):
        e(f"v_cos_f32 v{TC+i}, v9")
        e(f"v_sin_f32 v{TS+i}, v9")
        e(f"v_add_f32 v9, v9, v{10 if i == 3 else 8}")
    e(f"""
    v_lshrrev_b32 v13, 1, v2
    v_xor_b32 v13, v13, v3
    v_lshlrev_b32 v13, 4, v13
    v_lshl_add_u32 v13, v2, 7, v13
    v_add_u32 v13, {YL}, v13
    v_xor_b32 v14, 64, v13
    """)
    p.wait(vm="Y")
    p("s_barrier")
    for part in range(2):
        for j in range(2):
            for ks in range(2):
                p(f"ds_read_b128 {vr(YF+16*part+8*j+4*ks)}, v{13+ks} offset:{part*4096+j*2048}")
    p.tag_lg("y")
    for j in range(2):
        e(f"""
        v_add_u32 v8, {16*j}, v2
        v_cvt_f32_u32 v8, v8
        v_mul_f32 v8, {f32(1/32)}, v8
        v_mul_f32 v9, v12, v8
        v_mul_f32 v10, {f32(13.0)}, v8
        """)
        for i in range(8):
            e(f"v_cos_f32 v{TM+i}, v9")
            e(f"v_sin_f32 v{TM+8+i}, v9")
            if i < 7: e(f"v_add_f32 v9, v9, v{10 if i == 3 else 8}")
        for q in range(4):
            e(f"v_cvt_pk_bf16_f32 v{C3+4*j+q}, v{TM+2*q}, v{TM+2*q+1}")
            e(f"v_cvt_pk_bf16_f32 v{S3+4*j+q}, v{TM+8+2*q}, v{TM+9+2*q}")
            e(f"v_xor_b32 v{N3+4*j+q}, 0x80008000, v{S3+4*j+q}")
    stamp(p, 2)
    p.wait(lg="y")
    yr = lambda j, ks: vr(YF+8*j+4*ks); yi = lambda j, ks: vr(YF+16+8*j+4*ks)
    Ar = lambda j: AC+4*j; Ai = lambda j: AC+8+4*j
    for ks in range(2):
        for j in range(2):
            e(f"{MF} {vr(Ar(j))}, {yr(j,ks)}, {vr(FC+4*ks)}, {'0' if ks == 0 else vr(Ar(j))}")
            e(f"{MF} {vr(Ai(j))}, {yi(j,ks)}, {vr(FC+4*ks)}, {'0' if ks == 0 else vr(Ai(j))}")
        for j in range(2):
            e(f"{MF} {vr(Ar(j))}, {yi(j,ks)}, {vr(FS+4*ks)}, {vr(Ar(j))}")
            e(f"{MF} {vr(Ai(j))}, {yr(j,ks)}, {vr(FN+4*ks)}, {vr(Ai(j))}")
    p.wait(vm="WT")
    for i in range(8):
        e(f"v_lshlrev_b32 v{WR+i}, 16, v{WRAW+i}")
        e(f"v_and_b32 v{WI+i}, 0xffff0000, v{WRAW+i}")
    def mulpack(c, s, conj):
        for h in range(4):
            cmul(e, AC+2*h, AC+8+2*h, c+2*h, s+2*h, conj, TM+2*h, TM+8+2*h)
        for h in range(4):
            e(f"v_cvt_pk_bf16_f32 v{PK+h}, v{TM+2*h}, v{TM+2*h+1}")
            e(f"v_cvt_pk_bf16_f32 v{PK+4+h}, v{TM+8+2*h}, v{TM+9+2*h}")
    mulpack(TC, TS, False)
    Br, Bi = vr(PK), vr(PK+4)
    def stage32(sr, si):
        for j in range(2):
            e(f"{MF} {vr(Ar(j))}, {vr(C3+4*j)}, {Br}, 0")
            e(f"{MF} {vr(Ai(j))}, {vr(C3+4*j)}, {Bi}, 0")
        for j in range(2):
            e(f"{MF} {vr(Ar(j))}, {vr(sr+4*j)}, {Bi}, {vr(Ar(j))}")
            e(f"{MF} {vr(Ai(j))}, {vr(si+4*j)}, {Br}, {vr(Ai(j))}")
    stage32(S3, N3)
    e(f"""
    v_lshlrev_b32 v7, 6, v5
    v_lshl_add_u32 v7, v3, 3, v7
    v_add_u32 v7, {UL}, v7
    v_bfe_u32 v8, v1, 2, 2
    v_lshl_add_u32 v8, v3, 3, v8
    v_lshlrev_b32 v8, 6, v8
    v_and_b32 v9, 3, v1
    v_lshl_add_u32 v8, v9, 3, v8
    v_add_u32 v8, {UL}, v8
    """)
    mulpack(WR, WI, True)
    stage32(N3, S3)
    e(f"""
    s_lshl_b32 s33, s30, 2
    v_add_u32 v9, s33, v3
    v_and_b32 v10, 14, v2
    v_xor_b32 v9, v9, v10
    v_lshlrev_b32 v9, 3, v9
    v_lshl_add_u32 v9, v2, 7, v9
    v_add_u32 v9, {ZL}, v9
    """)
    mulpack(TC, TS, True)
    for part in range(2):
        for jb in range(2):
            p(f"ds_write_b64 v7, {vr(PK+4*part+2*jb,2)} offset:{part*4096+jb*32}")
    e(f"""
    s_and_b32 s33, s2, 1
    s_bfe_u32 s34, s2, 0x10002
    s_lshl_b32 s34, s34, 1
    s_or_b32 s33, s33, s34
    s_lshl_b32 s33, s33, 1
    v_and_b32 v10, 7, v1
    v_xor_b32 v10, s33, v10
    v_xor_b32 v10, v10, v3
    v_lshlrev_b32 v10, 4, v10
    v_lshrrev_b32 v12, 3, v1
    v_lshl_add_u32 v10, v12, 7, v10
    s_lshl_b32 s33, s30, 11
    s_add_u32 s34, s33, {ZL}
    v_add_u32 v10, s34, v10
    v_xor_b32 v12, 64, v10
    s_add_u32 s47, s33, s36
    s_add_u32 s47, s47, {Z_OFF:#x}
    """)
    p("s_waitcnt lgkmcnt(0)")
    p("s_barrier")
    UF = YF
    for ks in range(2):
        for part in range(2):
            for jb in range(2):
                for h in range(2):
                    p(f"ds_read_b64_tr_b16 {vr(UF+16*part+8*jb+4*ks+2*h,2)}, v8 offset:{part*4096+ks*2048+h*256+jb*32}")
        p.tag_lg(("u", ks))
    e(f"""
    v_lshrrev_b32 v7, 2, v1
    v_mul_u32_u24 v7, 224, v7
    v_and_b32 v8, 3, v1
    v_lshl_add_u32 v7, v8, 3, v7
    v_add_u32 v13, {8*7168}, v7
    """)
    ur = lambda j, ks: vr(UF+8*j+4*ks); ui = lambda j, ks: vr(UF+16+8*j+4*ks)
    for ks in range(2):
        p.wait(lg=("u", ks))
        for j in range(2):
            e(f"{MF} {vr(Ar(j))}, {vr(FC+4*ks)}, {ur(j,ks)}, {'0' if ks == 0 else vr(Ar(j))}")
            e(f"{MF} {vr(Ai(j))}, {vr(FC+4*ks)}, {ui(j,ks)}, {'0' if ks == 0 else vr(Ai(j))}")
        for j in range(2):
            e(f"{MF} {vr(Ar(j))}, {vr(FN+4*ks)}, {ui(j,ks)}, {vr(Ar(j))}")
            e(f"{MF} {vr(Ai(j))}, {vr(FS+4*ks)}, {ur(j,ks)}, {vr(Ai(j))}")
    for q in range(8):
        e(f"v_cvt_pk_bf16_f32 v{PK+q}, v{AC+2*q}, v{AC+2*q+1}")
    for part in range(2):
        for jb in range(2):
            p(f"ds_write_b64 v9, {vr(PK+4*part+2*jb,2)} offset:{part*4096+jb*2048}")
    while ("vm", ("ch", 0)) not in p.tags: sd.flush(1)
    p.wait(vm=("ch", 0), lg=0)
    p("s_barrier")
    stamp(p, 3)
    p(f"""
    ds_read_b128 {vr(TM)}, v10
    ds_read_b128 {vr(TM+4)}, v12 offset:1024
    """)
    p.tag_lg("z")
    def wreads(s):
        out = []
        for u in range(7):
            for h in range(2):
                out.append(f"ds_read_b64_tr_b16 {vr(WB+28*(s&1)+4*u+2*h,2)}, v{7 if s < 8 else 13} offset:{W1L+(s&7)*7168+h*3584+u*32}")
        return out
    for l in wreads(0): p(l)
    p.tag_lg(("w", 0))
    p.wait(lg="z")
    p(f"""
    buffer_store_dwordx4 {vr(TM)}, v4, s[24:27], s47 offen{OPT['st_far']}
    buffer_store_dwordx4 {vr(TM+4)}, v4, s[24:27], s47 offen offset:1024{OPT['st_far']}
    """)
    for s in range(16):
        nxt = []
        if s < 15:
            if (s + 1) % 4 == 0:
                c = (s + 1) // 4
                while ("vm", ("ch", c)) not in p.tags: sd.flush(1)
                p.wait(vm=("ch", c))
                p("s_barrier")
            nxt = wreads(s + 1)
        p.wait(lg=("w", s))
        k = 0
        for u in range(7):
            for jj in range(2):
                acc = vr(HA+28*jj+4*u)
                e(f"{MF} {acc}, {vr(WB+28*(s&1)+4*u)}, {ar((jj*16+s)*4)}, {'0' if s == 0 else acc}")
                for _ in range(2):
                    if k < len(nxt): p(nxt[k]); k += 1
        p.tag_lg(("w", s+1))
        if s >= 8 and s % 2 == 0: pf2()
    sd.flush()
    stamp(p, 4)
    p(f"""
    s_mov_b32 s40, {f32(-1.4426950408889634)}
    s_mov_b32 s41, s40
    s_mov_b32 s42, 1.0
    s_mov_b32 s43, 1.0
    s_lshr_b32 s33, s30, 1
    s_lshl_b32 s34, s28, 1
    s_add_u32 s33, s33, s34
    s_mul_i32 s33, s33, 56
    s_lshr_b32 s34, s29, 1
    s_mul_i32 s34, s34, 7
    s_add_u32 s33, s33, s34
    s_lshl_b32 s33, s33, 12
    s_and_b32 s34, s30, 1
    s_lshl_b32 s34, s34, 11
    s_add_u32 s33, s33, s34
    s_add_u32 s33, s33, {H_OFF:#x}
    s_and_b32 s34, s29, 1
    s_mul_i32 s35, s34, {3*4096}
    s_add_u32 s35, s35, s33
    s_lshl_b32 s34, s34, 3
    s_add_u32 s33, s33, s34
    s_add_u32 s33, s33, {6*4096}
    """)
    T0 = 16
    order = [6, 0, 1, 2, 3, 4, 5]
    groups = [(jj, u) for u in order for jj in range(2)]
    OUT = 80
    for gi, (jj, u) in enumerate(groups):
        a = HA+28*jj+4*u
        t = T0 + 4*(gi & 3)
        o = OUT + 16*jj + 2*u
        p(f"""
        v_pk_mul_f32 {vr(t,2)}, {vr(a,2)}, s[40:41]
        v_pk_mul_f32 {vr(t+2,2)}, {vr(a+2,2)}, s[40:41]
        v_exp_f32 v{t}, v{t}
        v_exp_f32 v{t+1}, v{t+1}
        v_exp_f32 v{t+2}, v{t+2}
        v_exp_f32 v{t+3}, v{t+3}
        v_pk_add_f32 {vr(t,2)}, {vr(t,2)}, s[42:43]
        v_pk_add_f32 {vr(t+2,2)}, {vr(t+2,2)}, s[42:43]
        v_rcp_f32 v{t}, v{t}
        v_rcp_f32 v{t+1}, v{t+1}
        v_rcp_f32 v{t+2}, v{t+2}
        v_rcp_f32 v{t+3}, v{t+3}
        v_pk_mul_f32 {vr(t,2)}, {vr(t,2)}, {vr(a,2)}
        v_pk_mul_f32 {vr(t+2,2)}, {vr(t+2,2)}, {vr(a+2,2)}
        v_cvt_pk_bf16_f32 v{o}, v{t}, v{t+1}
        v_cvt_pk_bf16_f32 v{o+1}, v{t+2}, v{t+3}
        """)
        if u in (1, 3, 5):
            if jj == 0 and u > 1: p("s_add_u32 s35, s35, 0x1000")
            p(f"buffer_store_dwordx4 {vr(o-2)}, v4, s[24:27], s35 offen offset:{1024*jj}{OPT['st_near']}")
        if u == 6:
            p(f"buffer_store_dwordx2 {vr(o,2)}, v4, s[24:27], s33 offen offset:{1024*jj}{OPT['st_near']}")
        if gi in (0, 2, 4, 6): pf2()
    stamp(p, 5)
    stamp_end(p, 6, 1)
    p("L_end_k2:")
    return kernel_text("k2_kernel", p, 256, 128)

def fAB(kb):
    jp, pp = divmod(kb, 7)
    fA = 224*jp + (32*pp if pp < 3 else (112 + 32*(pp-3) if pp < 6 else 96))
    return fA, fA + (112 if pp == 6 else 16)

def k3():
    p = Prog(); p.name = "k3"
    stamp_begin(p)
    p("""
    s_load_dwordx2 s[4:5], s[0:1], 0
    s_load_dwordx4 s[8:11], s[0:1], 40
    s_load_dwordx2 s[6:7], s[0:1], 64
    """)
    prologue(p)
    GL, ZL, XL = 0, 65536, 131072
    GA, SA, TM, XV = 16, 80, 96, 128
    ZF, GF, WF = 136, 144, 176
    NSLOT = 8
    LA = OPT.get('k3la', 6)
    p(f"""
    s_and_b32 s28, s2, 7
    s_lshl_b32 s28, s28, 2
    s_bfe_u32 s31, s2, 0x20003
    s_add_u32 s28, s28, s31            ; tb
    s_lshr_b32 s29, s2, 5              ; db
    v_lshlrev_b32 v4, 4, v1
    v_lshrrev_b32 v5, 3, v1
    v_lshlrev_b32 v6, 12, v5
    v_and_b32 v7, 7, v1
    v_lshl_add_u32 v6, v7, 4, v6
    s_lshl_b32 s36, s30, 15
    s_lshl_b32 s33, s28, 7
    s_add_u32 s36, s36, s33
    s_add_u32 s36, s36, {Z_OFF:#x}
    s_lshl_b32 s37, s30, 10
    s_add_u32 s37, s37, {ZL}
    s_lshl_b32 s41, s29, 1
    v_lshlrev_b32 v8, 15, v5
    v_lshl_add_u32 v8, v7, 4, v8
    s_lshl_b32 s38, s30, 19
    s_lshl_b32 s33, s28, 10
    s_add_u32 s38, s38, s33
    s_lshl_b32 s33, s29, 7
    s_add_u32 s38, s38, s33
    s_add_u32 s39, s38, 0x40000
    s_lshl_b32 s40, s30, 11
    s_add_u32 s40, s40, {XL}
    s_mul_i32 s42, s28, 56
    s_mul_i32 s33, s30, 14
    s_add_u32 s42, s42, s33
    s_lshl_b32 s42, s42, 12
    s_add_u32 s42, s42, {H_OFF:#x}
    s_lshl_b32 s33, s30, 10
    v_add_u32 v208, s33, v4
    v_add_u32 v209, 0x400, v208
    v_add_u32 v210, 0x800, v208
    v_add_u32 v211, 0xc00, v208
    v_and_b32 v209, 0xfff, v209
    v_and_b32 v210, 0xfff, v210
    v_and_b32 v211, 0xfff, v211
    v_bfe_u32 v9, v1, 4, 2
    v_lshlrev_b32 v9, 1, v9
    v_xor_b32 v9, v9, v7
    v_lshlrev_b32 v9, 4, v9
    v_lshl_add_u32 v212, v5, 10, v9    ; r8*1024 + chunk*16
    s_mul_i32 s43, s30, {448*1024}
    s_lshl_b32 s33, s29, 7
    s_add_u32 s43, s43, s33
    s_lshl_b32 s44, s30, 15
    s_lshl_b32 s33, s29, 6
    s_lshl_b32 s34, s30, 4
    s_add_u32 s33, s33, s34
    v_add_u32 v9, s33, v2
    v_cvt_f32_u32 v9, v9
    v_mul_f32 v10, {f32(-1/512)}, v9
    v_lshlrev_b32 v11, 2, v3
    v_cvt_f32_u32 v11, v11
    v_mul_f32 v11, v11, v10
    v_mul_f32 v12, {f32(13.0)}, v10
    v_mul_f32 v13, -0.5, v9
    v_cmp_eq_u32 vcc, 0, v3
    v_cndmask_b32 v13, v11, v13, vcc
    s_lshl_b32 s33, s30, 10
    v_add_u32 v14, s33, v4
    """)
    def gen(ks, e):
        T = TM + 12 * (ks & 1)
        for m in range(4):
            src = 13 if (ks == 0 and m == 0) else 11
            e(f"v_cos_f32 v{T+2*m}, v{src}")
            e(f"v_sin_f32 v{T+2*m+1}, v{src}")
            if not (ks == 15 and m == 3): e(f"v_add_f32 v11, v11, v{12 if m == 3 else 10}")
        for m in range(4):
            e(f"v_cvt_pk_bf16_f32 v{T+8+m}, v{T+2*m}, v{T+2*m+1}")
        e(f"ds_write_b128 v14, {vr(T+8)} offset:{GL+ks*4096}")
    for ks in range(2): gen(ks, p)
    p("s_waitcnt lgkmcnt(0)")
    stamp(p, 1)
    srd(p, 24, 6, WS_BYTES)
    srd(p, 12, 4, 2*MB)
    srd(p, 16, 10, 2*MB)
    srd(p, 20, 8, 512*1792*2)
    sd = Side(p, OPT.get("k3gap", 68))
    for m in range(16):
        def f(m=m):
            p(f"""
            s_add_u32 s52, s41, {m}
            s_and_b32 s52, s52, 15
            s_lshl_b32 s53, s52, 12
            s_add_u32 m0, s53, s37
            s_lshl_b32 s52, s52, 17
            s_add_u32 s52, s52, s36
            buffer_load_dwordx4 v6, s[24:27], s52 offen lds
            """)
            if m == 15: p.tag_vm("Z")
        sd.add(f)
    def xl():
        p(f"""
        s_mov_b32 m0, s40
        buffer_load_dwordx4 v8, s[12:15], s38 offen lds
        s_add_u32 m0, s40, 1024
        buffer_load_dwordx4 v8, s[12:15], s39 offen lds
        """)
        p.tag_vm("x")
    sd.add(xl)
    p.scratch = "v218"
    pf_setup(p, "v217", 7)
    p(f"""
    s_lshr_b32 s50, s2, 6
    s_mul_i32 s50, s50, {448*1024}
    s_bfe_u32 s53, s2, 0x30003
    s_mul_i32 s53, s53, 28672
    s_add_u32 s50, s50, s53
    s_add_u32 s50, s50, {224*1024}
    """)
    def pf():
        if OPT["pf"]:
            p("buffer_load_dword v218, v217, s[20:23], s50 offen")
            p(f"s_add_u32 s50, s50, {28*128}")
    def hload(n, i):
        def f():
            if i == 0: p(f"s_add_u32 s45, s42, {4096*n}")
            if i == 0 and n < 8: pf()
            p(f"buffer_load_dwordx4 {ar(16*n+4*i)}, v{208+i}, s[24:27], s45 offen")
            if i == 3: p.tag_vm(("h", n))
        return f
    def wload(n, q):
        def f():
            fA, fB = fAB(n)
            row = (fA, fA + 8, fB, fB + 8)[q]
            p(f"s_add_u32 m0, s44, {(n % NSLOT)*4096 + q*1024}")
            p(f"s_add_u32 s52, s43, {row*1024}")
            p(f"buffer_load_dwordx4 v212, s[20:23], s52 offen lds")
            if q == 3: p.tag_vm(("w", n))
        return f
    NH = OPT.get("k3nh", 10)
    for n in range(NH):
        for i in range(4): sd.add(hload(n, i))
    sd.flush(3)
    e = sd.emit
    for ks in range(2, 16): gen(ks, e)
    e(f"""
    v_bfe_u32 v9, v1, 3, 2
    v_xor_b32 v9, s30, v9
    v_lshlrev_b32 v9, 5, v9
    v_and_b32 v10, 3, v1
    v_lshl_add_u32 v9, v10, 3, v9
    v_bfe_u32 v11, v1, 2, 2
    v_lshl_add_u32 v11, v3, 3, v11
    v_lshl_add_u32 v9, v11, 7, v9
    v_add_u32 v9, {ZL}, v9
    v_bfe_u32 v11, v1, 3, 2
    v_lshlrev_b32 v11, 5, v11
    v_lshl_add_u32 v11, v10, 3, v11
    v_lshrrev_b32 v12, 2, v1
    v_lshl_add_u32 v11, v12, 7, v11
    v_add_u32 v213, s44, v11
    v_xor_b32 v214, 32, v213
    v_xor_b32 v215, 64, v213
    v_xor_b32 v216, 0x60, v213
    v_lshlrev_b32 v10, 7, v2
    v_lshl_add_u32 v10, v3, 3, v10
    v_add_u32 v10, s40, v10
    v_add_u32 v13, s40, v4
    """)
    stamp(p, 2)
    while ("vm", "Z") not in p.tags: sd.flush(1)
    p.wait(vm="Z", lg=0)
    p("s_barrier")
    stamp(p, 3)
    def ireads(ks):
        o = [f"ds_read_b64_tr_b16 {vr(ZF+4*(ks&1)+2*h,2)}, v9 offset:{ks*4096+h*512}" for h in range(2)]
        o += [f"ds_read_b128 {vr(GF+16*(ks&1)+4*ds)}, v4 offset:{GL+ks*4096+ds*1024}" for ds in range(4)]
        return o
    for l in ireads(0): p(l)
    p.tag_lg(("i", 0))
    for ks in range(16):
        if ks < 15:
            for l in ireads(ks+1): e(l)
        p.wait(lg=("i", ks))
        p.tag_lg(("i", ks+1))
        for ds in range(4):
            acc = vr(SA+4*ds)
            e(f"{MF} {acc}, {vr(GF+16*(ks&1)+4*ds)}, {vr(ZF+4*(ks&1))}, {'0' if ks == 0 else acc}")
    p("s_barrier")
    stamp(p, 4)
    sd.flush()
    for n in range(LA):
        for q in range(4): sd.add(wload(n, q))
    sd.flush(8)
    p.wait(vm="x")
    for ds in range(4): p(f"ds_read_b64 {vr(XV+2*ds,2)}, v10 offset:{32*ds}")
    p.tag_lg("x")
    sd.gap = 32
    for q in range(8):
        e(f"v_cvt_pk_bf16_f32 v{TM}, v{SA+2*q}, v{SA+2*q+1}")
        e(f"v_lshlrev_b32 v{SA+2*q}, 16, v{TM}")
        e(f"v_and_b32 v{SA+2*q+1}, 0xffff0000, v{TM}")
    p.wait(lg="x")
    for q in range(8):
        e(f"v_lshlrev_b32 v{GF+2*q}, 16, v{XV+q}")
        e(f"v_and_b32 v{GF+2*q+1}, 0xffff0000, v{XV+q}")
    e(f"""
    s_mov_b32 s46, {f32(-1.4426950408889634)}
    s_mov_b32 s47, s46
    s_mov_b32 s48, 1.0
    s_mov_b32 s49, 1.0
    v_add_u32 v11, s44, v4
    v_add_u32 v11, 0x4000, v11
    s_add_u32 s33, s44, {3*32768}
    s_and_b32 s33, s33, 0x1ffff
    s_add_u32 s33, s33, 0x4000
    v_add_u32 v12, s33, v4
    s_add_u32 s33, s44, {2*32768}
    s_and_b32 s33, s33, 0x1ffff
    s_add_u32 s33, s33, 0x5000
    v_add_u32 v14, s33, v4
    s_add_u32 s33, s44, {1*32768}
    s_and_b32 s33, s33, 0x1ffff
    s_add_u32 s33, s33, 0x6000
    v_add_u32 v15, s33, v4
    """)
    def wreads(n):
        return [f"ds_read_b64_tr_b16 {vr(WF+16*(n&1)+4*ds+2*h,2)}, v{213+ds} offset:{(n%NSLOT)*4096+h*2048}" for ds in range(4) for h in range(2)]
    while ("vm", ("w", 0)) not in p.tags: sd.flush(1)
    p.wait(vm=("w", 0))
    for l in wreads(0): p(l)
    p.tag_lg(("w", 0))
    hn = NH
    for n in range(14):
        if n + LA < 14:
            for q in range(4): sd.add(wload(n + LA, q))
        if hn < 14 and n >= 2:
            for i in range(4): sd.add(hload(hn, i))
            hn += 1
        nxt = []
        if n < 13:
            while ("vm", ("w", n+1)) not in p.tags: sd.flush(1)
            p.wait(vm=("w", n+1))
            nxt = wreads(n + 1)
        while ("vm", ("h", n)) not in p.tags: sd.flush(1)
        p.wait(vm=("h", n), lg=("w", n))
        k = 0; m = 0
        for i in range(4):
            for ds in range(4):
                acc = vr(GA+16*i+4*ds)
                p(f"{MF} {acc}, {vr(WF+16*(n&1)+4*ds)}, {ar(16*n+4*i)}, {'0' if n == 0 else acc}")
                m += 1
                if k < len(nxt): p(nxt[k]); k += 1
                if m % 2 == 0: sd.flush(1)
        p.tag_lg(("w", n+1))
    stamp(p, 5)
    for i in (1, 2, 3):
        for ds in range(4):
            p(f"ds_write_b128 v11, {vr(GA+16*i+4*ds)} offset:{(i-1)*4096+ds*1024}")
    p("s_waitcnt lgkmcnt(0)")
    p("s_barrier")
    for i, a in ((1, 12), (2, 14), (3, 15)):
        for ds in range(4):
            p(f"ds_read_b128 {vr(GA+16*i+4*ds)}, v{a} offset:{ds*1024}")
    p("s_waitcnt lgkmcnt(8)")
    for q in range(8): p(f"v_pk_add_f32 {vr(GA+2*q,2)}, {vr(GA+2*q,2)}, {vr(GA+16+2*q,2)}")
    p("s_waitcnt lgkmcnt(4)")
    for q in range(8): p(f"v_pk_add_f32 {vr(GA+2*q,2)}, {vr(GA+2*q,2)}, {vr(GA+32+2*q,2)}")
    p("s_waitcnt lgkmcnt(0)")
    stamp(p, 6)
    for q in range(8): p(f"v_pk_add_f32 {vr(GA+2*q,2)}, {vr(GA+2*q,2)}, {vr(GA+48+2*q,2)}")
    T = GA + 16
    for q in range(8): p(f"v_pk_mul_f32 {vr(T+2*q,2)}, {vr(GA+2*q,2)}, s[46:47]")
    for q in range(16): p(f"v_exp_f32 v{T+q}, v{T+q}")
    for q in range(8): p(f"v_pk_add_f32 {vr(T+2*q,2)}, {vr(T+2*q,2)}, s[48:49]")
    for q in range(8): p(f"v_pk_mul_f32 {vr(GA+2*q,2)}, {vr(GA+2*q,2)}, {vr(SA+2*q,2)}")
    for q in range(16): p(f"v_rcp_f32 v{T+q}, v{T+q}")
    for q in range(8):
        p(f"v_pk_fma_f32 {vr(T+2*q,2)}, {vr(T+2*q,2)}, {vr(GA+2*q,2)}, {vr(GF+2*q,2)}")
    for ds in range(4):
        p(f"v_cvt_pk_bf16_f32 v{TM+2*ds}, v{T+4*ds}, v{T+4*ds+1}")
        p(f"v_cvt_pk_bf16_f32 v{TM+2*ds+1}, v{T+4*ds+2}, v{T+4*ds+3}")
        p(f"ds_write_b64 v10, {vr(TM+2*ds,2)} offset:{32*ds}")
    p(f"""
    s_waitcnt lgkmcnt(0)
    ds_read_b128 {vr(TM+8)}, v13
    ds_read_b128 {vr(TM+12)}, v13 offset:1024
    s_waitcnt lgkmcnt(1)
    buffer_store_dwordx4 {vr(TM+8)}, v8, s[16:19], s38 offen
    s_waitcnt lgkmcnt(0)
    buffer_store_dwordx4 {vr(TM+12)}, v8, s[16:19], s39 offen
    """)
    stamp(p, 7)
    stamp_end(p, 8, 2)
    p("L_end_k3:")
    return kernel_text("k3_kernel", p, 220, 224)

HEADER = open("cdna_kernels/" + NAME + ".s.ref").read().split("; Override")[0]

def build(kernels, path):
    txt = HEADER
    for name, lds, _ in kernels:
        txt += f"; @launch kernel={name} grid=(256,1,1) block=(256,1,1) lds={lds}\n"
    txt += '.amdgcn_target "amdgcn-amd-amdhsa--gfx950"\n'
    for _, _, body in kernels:
        txt += body
    open(path, "w").write(txt)

def main(argv):
    out = "v2.s"
    for a in argv:
        if a == "--stamps": OPT["stamps"] = True
        elif a.startswith("--out="): out = a[6:]
        elif a.startswith("--"):
            k, v = a[2:].split("=")
            if k.startswith("st_"): OPT[k] = (" " + v.replace("_", " ")) if v else ""
            else: OPT[k] = int(v)
    build([("k1_kernel", 114688, k1()), ("k2_kernel", 131072, k2()), ("k3_kernel", 139264, k3())], out)

if __name__ == "__main__":
    main(sys.argv[1:])
```

```python
from asmgen import *
import gen2
gen2.OPT["stamps"] = True
from gen2 import *
R = 80*MB
def kern(idx, rows_log2, rot=True, stride=32768):
    p = Prog(); p.name = f"q{idx}"
    stamp_begin(p)
    p("s_load_dwordx2 s[10:11], s[0:1], 64")
    prologue(p)
    p("s_waitcnt lgkmcnt(0)")
    srd(p, 24, 10, WS_BYTES)
    nr = 1 << rows_log2; seg = 1024 >> rows_log2; lpr = 64 >> rows_log2
    p(f"""
    s_and_b32 s37, s2, 7
    s_lshl_b32 s37, s37, 2
    s_bfe_u32 s38, s2, 0x20003
    s_add_u32 s37, s37, s38
    s_and_b32 s39, s37, 15
    s_lshr_b32 s38, s2, 5
    v_lshrrev_b32 v5, {6-rows_log2}, v1
    v_mul_u32_u24 v5, {stride}, v5
    v_and_b32 v6, {lpr-1}, v1
    v_lshl_add_u32 v5, v6, 4, v5
    s_and_b32 s50, s30, 1
    s_mul_i32 s50, s50, {32*stride}
    s_lshl_b32 s51, s39, 1
    s_lshr_b32 s52, s30, 1
    s_add_u32 s51, s51, s52
    s_lshl_b32 s51, s51, {10 if stride == 32768 else 16}
    s_add_u32 s31, s50, s51
    s_add_u32 s31, s31, {R:#x}
    s_lshl_b32 s41, s30, 14
    s_mov_b32 m0, s41
    s_lshl_b32 s53, s38, 2
    """)
    stamp(p, 1)
    ng = 32 // nr
    for i in range(32):
        if rot:
            p(f"s_add_u32 s54, s53, {i}\ns_and_b32 s54, s54, 31")
        else: p(f"s_mov_b32 s54, {i}")
        p(f"""
        s_lshr_b32 s55, s54, {5-rows_log2}
        s_mul_i32 s55, s55, {seg}
        s_and_b32 s54, s54, {ng-1}
        s_mul_i32 s54, s54, {nr*stride}
        s_add_u32 s54, s54, s55
        s_add_u32 s33, s31, s54
        buffer_load_dwordx4 v5, s[24:27], s33 offen lds
        """)
    stamp(p, 2)
    stamp_end(p, 3, idx)
    p(f"L_end_q{idx}:")
    return kernel_text(f"q{idx}_kernel", p, 120)
cf = [(3,1,32768), (3,1,32768), (2,1,32768), (1,1,32768), (0,1,32768), (3,0,32768), (0,0,32768), (3,1,1024), (3,1,1024)]
build([(f"q{i}_kernel", 65536, kern(i, *c)) for i, c in enumerate(cf)], "pat2.s")
```
